```python
import torch

def _softmax(x, axis=-1):
    return torch.softmax(x, dim=axis)
def _gelu(x):
    return torch.nn.functional.gelu(x, approximate="tanh")
def _silu(x):
    return torch.nn.functional.silu(x)
def _sigmoid(x):
    return torch.sigmoid(x)
def _layernorm(x, axis=-1, eps=1e-5):
    m = x.mean(dim=axis, keepdim=True)
    v = x.var(dim=axis, keepdim=True, unbiased=False)
    return (x - m) / torch.sqrt(v + eps)
def _scatter_add(tgt, idx, src, axis=0):
    return tgt.clone().index_add_(axis, idx, src)
def _segment_sum(src, seg, n):
    out = torch.zeros((n,) + src.shape[1:], dtype=src.dtype)
    return out.index_add_(0, seg, src)
def _pad(x, pw):
    flat = tuple(v for pair in reversed(pw) for v in pair)
    return torch.nn.functional.pad(x, flat)

kernel_name = 'gated_mix__grouped_kv_mqa__mixer_token_mlp__prompt'

def setup_inputs():

    _w = (lambda a: (lambda t: t.to(torch.bfloat16) if t.is_floating_point() else t)(torch.as_tensor(a)))
    def _A_setup():
        B, S, D, H = 1, 2048, 640, 32
        Dh = D // H
        return {
            "x": _w((lambda *s: torch.randn(*s, dtype=torch.bfloat16) * 0.05)(B, S, D)),
            "wq": _w((lambda *s: torch.randn(*s, dtype=torch.bfloat16) * 0.8)(D, H * Dh)),
            "wk": _w((lambda *s: torch.randn(*s, dtype=torch.bfloat16) * 0.8)(D, Dh)),
            "wv": _w((lambda *s: torch.randn(*s, dtype=torch.bfloat16) * 0.05)(D, Dh)),
            "wo": _w((lambda *s: torch.randn(*s, dtype=torch.bfloat16) * 0.05)(H * Dh, D)),
        }
    _A_in = _A_setup()

    def _B_setup():
        B, S, D, F = 1, 2048, 640, 1728
        return {
            "x": _w((lambda *s: torch.randn(*s, dtype=torch.bfloat16) * 0.05)(B, S, D)),
            "w1": _w((lambda *s: torch.randn(*s, dtype=torch.bfloat16) * 0.2)(S, F) * (S ** -0.5)),
            "b1": _w((lambda *s: torch.randn(*s, dtype=torch.bfloat16) * 3.2)(F) * 0.02),
            "w2": _w((lambda *s: torch.randn(*s, dtype=torch.bfloat16) * 0.05)(F, S) * (F ** -0.5)),
            "b2": _w((lambda *s: torch.randn(*s, dtype=torch.bfloat16) * 0.1)(S) * 0.02),
        }
    _B_in = _B_setup()

    return {
        "A_x": _A_in["x"],
        "A_wq": _A_in["wq"],
        "A_wk": _A_in["wk"],
        "A_wv": _A_in["wv"],
        "A_wo": _A_in["wo"],
        "B_x": _B_in["x"],
        "B_w1": _B_in["w1"],
        "B_b1": _B_in["b1"],
        "B_w2": _B_in["w2"],
        "B_b2": _B_in["b2"],
        "gate_w": _w((lambda *s: torch.randn(*s, dtype=torch.bfloat16) * 0.05)(640) * 16.0),
    }

def reference(A_x, A_wq, A_wk, A_wv, A_wo, B_x, B_w1, B_b1, B_w2, B_b2, gate_w):
    def _A_ref(x, wq, wk, wv, wo):
        B, S, D = x.shape
        H = 32
        Dh = D // H
        q = (lambda x, *d: x.permute(*d))((x @ wq).reshape(B, S, H, Dh), 0, 2, 1, 3)
        k = x @ wk
        v = x @ wv
        scores = torch.einsum("bhqd,bkd->bhqk", q, k) * (Dh ** -0.5)
        p = _softmax(scores, axis=-1)
        o = torch.einsum("bhqk,bkd->bhqd", p, v)
        return (lambda x, *d: x.permute(*d))(o, 0, 2, 1, 3).reshape(B, S, H * Dh) @ wo

    def _B_ref(x, w1, b1, w2, b2):
        B, S, D = x.shape
        h = _layernorm(x, axis=-1)
        u = torch.einsum("bsd,sf->bdf", h, w1) + b1
        u = _gelu(u)
        y = torch.einsum("bdf,fs->bds", u, w2) + b2
        return (lambda x, *d: x.permute(*d))(y, 0, 2, 1)

    x = A_x
    g = _sigmoid((x * gate_w).sum(-1, keepdims=True))
    a = _A_ref(x, A_wq, A_wk, A_wv, A_wo)
    b = _B_ref(x, B_w1, B_b1, B_w2, B_b2)
    return g * a + (1 - g) * b
```

```python
import re

class Asm:
    def __init__(self):
        self.l = []
        self.vm = []
        self.lg = []
    def __call__(self, s):
        for line in s.split("\n"):
            line = line.strip()
            if line:
                self.l.append(line)
    def vmem(self, s, tag=None):
        self.l.append(s); self.vm.append(tag)
    def ds(self, s, tag=None):
        self.l.append(s); self.lg.append(tag)
    def _n(self, q, tags):
        if not isinstance(tags, (list, tuple)) or (isinstance(tags, tuple)):
            tags = [tags]
        idx = [i for i, t in enumerate(q) if t in tags]
        if not idx:
            return None
        return len(q) - 1 - max(idx)
    def wait(self, vm=None, lg=None):
        parts = []
        if vm is not None:
            n = 0 if vm == "all" else self._n(self.vm, vm)
            if n is not None:
                n = min(n, 63)
                parts.append(f"vmcnt({n})")
                self.vm = self.vm[len(self.vm) - n:] if n else []
        if lg is not None:
            n = 0 if lg == "all" else self._n(self.lg, lg)
            if n is not None:
                n = min(n, 15)
                parts.append(f"lgkmcnt({n})")
                self.lg = self.lg[len(self.lg) - n:] if n else []
        if parts:
            self.l.append("s_waitcnt " + " ".join(parts))
    def nop(self, n):
        while n > 0:
            k = min(n, 16)
            self.l.append(f"s_nop {k-1}")
            n -= k
    def text(self):
        out = []
        for x in self.l:
            out.append(x if x.endswith(":") or x.startswith(".") or x.startswith(";") else "    " + x)
        return "\n".join(out) + "\n"

def vr(a, n=1):
    return f"v{a}" if n == 1 else f"v[{a}:{a+n-1}]"
def sr(a, n=1):
    return f"s{a}" if n == 1 else f"s[{a}:{a+n-1}]"

_reg = re.compile(r"^(-|\|)?(abs\()?([vsa])(\d+|\[(\d+):(\d+)\])\)?\|?$")
def regs(op):
    op = op.strip()
    if op in ("vcc", "exec", "m0", "vcc_lo", "vcc_hi", "exec_lo", "exec_hi"):
        return {op.split("_")[0]}
    m = _reg.match(op)
    if not m:
        return set()
    k = m.group(3)
    if m.group(5) is not None:
        return {f"{k}{i}" for i in range(int(m.group(5)), int(m.group(6)) + 1)}
    return {f"{k}{m.group(4)}"}

TRANS = ("v_exp_", "v_log_", "v_rcp_", "v_rsq_", "v_sqrt_", "v_sin_", "v_cos_")
class I:
    pass
def parse(line):
    line = line.split(";")[0].strip()
    if not line or line.endswith(":") or line.startswith("."):
        return None
    p = line.split(None, 1)
    i = I(); i.text = line; i.op = p[0]
    rest = p[1] if len(p) > 1 else ""
    ops = re.split(r",\s*(?![^\[]*\])", rest)
    last = ops[-1].split() if ops else []
    i.mods = " ".join(last[1:])
    if ops and last: ops[-1] = last[0]
    i.ops = ops
    R = [regs(o) for o in ops]
    op = i.op
    i.w = set(); i.r = set(); i.cls = "other"
    i.mfma = op.startswith("v_mfma") or op.startswith("v_smfmac")
    if i.mfma:
        i.cls = "mfma"; i.D = R[0]; i.A = R[1]; i.B = R[2]
        if op.startswith("v_smfmac"):
            i.C = R[0]; i.B = i.B | R[3]
        else:
            i.C = R[3]
        i.w = set(i.D); i.r = i.A | i.B | i.C
        i.passes = 8 if "32x32" in op else 4
    elif op.startswith("v_"):
        i.cls = "valu"
        if op.startswith("v_nop"):
            pass
        elif "permlane" in op and "swap" in op:
            i.w = R[0] | R[1]; i.r = R[0] | R[1]
        else:
            i.w = set(R[0]); i.r = set().union(*R[1:]) if len(R) > 1 else set()
            if op.startswith(("v_fmac", "v_dot2c", "v_writelane")) or "UNUSED_PRESERVE" in i.mods or "_dpp" in op:
                i.r |= R[0]
            if op.startswith(("v_add_co", "v_sub_co", "v_addc_co", "v_subb_co")):
                i.w |= R[1]
            if op.startswith("v_cmpx"):
                i.w |= {"exec"}
    elif op.startswith(("buffer_", "global_")):
        i.cls = "vmem"
        allr = set().union(*R) if R else set()
        if "load" in op and "lds" not in i.mods.split() and "_lds_" not in op:
            i.w = set(R[0]); i.r = set().union(*R[1:])
        elif "atomic" in op and "sc0" in i.mods.split():
            i.w = set(R[0]); i.r = allr
        else:
            i.r = allr
        i.isdma = "lds" in i.mods.split() or "_lds_" in op
        i.wide_store = ("store" in op and ("x3" in op or "x4" in op))
        if i.wide_store:
            i.data = R[0] if op.startswith("buffer_") else R[1]
    elif op.startswith("ds_"):
        i.cls = "ds"
        if "read" in op or "rtn" in op or "permute" in op or "swizzle" in op:
            i.w = set(R[0]); i.r = set().union(*R[1:]) if len(R) > 1 else set()
        else:
            i.r = set().union(*R) if R else set()
    elif op.startswith("s_"):
        i.cls = "salu"
        if op.startswith(("s_cmp", "s_cbranch", "s_branch", "s_waitcnt", "s_nop", "s_barrier", "s_sleep", "s_setprio", "s_endpgm", "s_bitcmp")):
            i.r = set().union(*R) if R else set()
        else:
            i.w = set(R[0]) if R else set(); i.r = set().union(*R[1:]) if len(R) > 1 else set()
            if "saveexec" in op: i.w |= {"exec"}; i.r |= {"exec"}
    i.trans = op.startswith(TRANS)
    i.dpp = "_dpp" in op
    return i

def states(i, timed):
    if i.op == "s_nop":
        return int(i.ops[0], 0) + 1
    if timed and i.trans: return 2
    return 1

def lint(lines, name=""):
    ins = [x for x in (parse(l) for l in lines) if x]
    msgs = []
    isv = lambda s: {r for r in s if r[0] in "va" and r != "vcc"}
    iss = lambda s: {r for r in s if r[0] == "s" or r == "vcc"}
    for n, c in enumerate(ins):
        d = 0; dt = 0
        for m in range(n - 1, max(-1, n - 24), -1):
            p = ins[m]
            if p.op in ("s_branch", "s_endpgm", "s_setpc_b64"):
                break
            need = 0; why = ""; use_t = False
            def req(k, w, t=False):
                nonlocal need, why, use_t
                if k > need: need, why, use_t = k, w, t
            if p.cls == "valu":
                wv = isv(p.w); ws = iss(p.w)
                if c.cls == "valu" and c.dpp and wv & c.r: req(2, "valu->dpp")
                if c.cls == "valu" and "permlane" in c.op and wv & c.r: req(2, "valu->permlane")
                if c.op.startswith(("v_readlane", "v_readfirstlane")) and wv & c.r: req(1, "valu->readlane")
                if c.mfma and wv & c.r: req(2, "valu->mfma")
                if p.trans and c.cls == "valu" and not c.trans and wv & c.r: req(1, "trans->valu")
                if c.cls == "valu" and ws & c.r: req(2, "valu sgpr->valu")
                if c.cls == "valu" and c.op.startswith("v_cndmask") and "vcc" in ws and len(c.ops) == 4 and c.ops[3] == "vcc": req(2, "vcc->cndmask")
                if c.cls == "vmem" and ws & c.r: req(5, "valu sgpr->vmem")
                if c.op.startswith(("v_readlane", "v_writelane")) and len(c.ops) > 2 and ws & regs(c.ops[2]): req(4, "lane select")
                if "exec" in p.w and (c.dpp): req(5, "exec->dpp")
                if "exec" in p.w and (c.mfma or "permlane" in c.op or c.op.startswith(("v_readlane", "v_readfirstlane", "v_writelane"))): req(4, "valu exec->")
                if ("sdwa" in p.op or ("op_sel" in p.mods and not p.op.startswith("v_pk"))) and c.cls == "valu" and wv & (c.r | c.w): req(1, "sdwa/opsel")
            if p.cls == "salu" and "m0" in p.w and ((c.cls == "vmem" and c.isdma) or "addtid" in c.op): req(1, "m0->dma")
            if p.cls == "vmem" and p.wide_store and (c.cls in ("valu", "mfma")) and p.data & c.w: req(2, "store data war")
            if p.cls == "vmem" and p.wide_store and c.cls in ("vmem", "ds") and p.data & c.w: req(1, "store data war")
            if p.mfma:
                big = p.passes == 8
                if c.mfma:
                    if p.D & c.C:
                        if not (p.D == c.C and p.passes == c.passes): req(10 if big else 6, "mfma D->C overlap", True)
                    if p.D & (c.A | c.B): req(12 if big else 8, "mfma D->AB", True)
                    if (p.D & c.D) and not (p.D & c.C) and p.passes > c.passes: req(6, "mfma WAW", True)
                elif c.cls in ("valu", "vmem", "ds"):
                    if p.D & (c.r | c.w): req(12 if big else 8, "mfma D->valu/mem", True)
                    if c.cls == "valu" and p.C & c.w: req(7 if big else 3, "mfma C war", True)
            have = dt if use_t else d
            if need > have:
                msgs.append(f"[{name}] {why}: need {need} have {have}: '{p.text}' -> '{c.text}'")
            d += states(p, False); dt += states(p, True)
    return msgs
```

```python
import sys, math
from asmlib import *

NAME = "gated_mix__grouped_kv_mqa__mixer_token_mlp__prompt"
HF, KF, QF, OF, GF, GV = 0, 0x280000, 0x2B0000, 0x530000, 0x7B0000, 0x9D0000
KT = 2688
K_T, K_C, V_A, V_B = 1024, 1280, 1296, 1968
P_X, P_WQ, P_WK, P_WV, P_WO, P_W1, P_B1, P_W2, P_B2, P_GW, P_OUT, P_DBG, P_WS = 4, 6, 8, 10, 12, 16, 18, 20, 22, 24, 26, 28, 30
S_W, S_TB, S_HB = 32, 33, 34
QSCALE = math.log2(math.e) / math.sqrt(20.0)
def fbits(x):
    import struct
    return "0x%08x" % struct.unpack("<I", struct.pack("<f", x))[0]

def srd(a, d, ptr, off, nbytes):
    if off == 0:
        a(f"s_mov_b32 s{d}, s{ptr}\ns_mov_b32 s{d+1}, s{ptr+1}")
    else:
        a(f"s_add_u32 s{d}, s{ptr}, {off}\ns_addc_u32 s{d+1}, s{ptr+1}, 0")
    a(f"s_mov_b32 s{d+2}, {nbytes}\ns_mov_b32 s{d+3}, 0x20000")

def head(a, label):
    a(f".p2align 8\n.type {label},@function\n{label}:")
    a(f"s_cmp_ge_u32 s2, 256\ns_cbranch_scc1 {label}_end")
    a("s_load_dwordx16 s[4:19], s[0:1], 0\ns_load_dwordx8 s[20:27], s[0:1], 64\ns_load_dwordx4 s[28:31], s[0:1], 96")
    a(f"v_lshrrev_b32 v1, 6, v0\nv_and_b32 v0, 63, v0\nv_readfirstlane_b32 s{S_W}, v1")
    a(f"s_and_b32 s35, s2, 7\ns_lshl_b32 s{S_TB}, s35, 2\ns_bfe_u32 s36, s2, 0x20003\ns_add_u32 s{S_TB}, s{S_TB}, s36\ns_lshr_b32 s{S_HB}, s2, 5")

def desc(label, nv):
    return f""".p2align 6
.amdhsa_kernel {label}
  .amdhsa_next_free_vgpr {nv}
  .amdhsa_next_free_sgpr 96
  .amdhsa_accum_offset {nv}
  .amdhsa_group_segment_fixed_size 0
  .amdhsa_kernarg_size 112
  .amdhsa_user_sgpr_count 2
  .amdhsa_user_sgpr_kernarg_segment_ptr 1
  .amdhsa_system_sgpr_workgroup_id_x 1
.end_amdhsa_kernel
"""

def wave_sum(a, rs):
    steps = ["quad_perm:[1,0,3,2] row_mask:0xf", "quad_perm:[2,3,0,1] row_mask:0xf", "row_half_mirror row_mask:0xf",
             "row_mirror row_mask:0xf", "row_bcast:15 row_mask:0xa", "row_bcast:31 row_mask:0xc"]
    for st in steps:
        a.nop(max(0, 2 - (len(rs) - 1)) if st != steps[0] else 2)
        for r in rs:
            a(f"v_add_f32_dpp v{r}, v{r}, v{r} {st} bank_mask:0xf")

def w160_patterns(a, vt, outs):
    for i in range(5):
        a(f"v_add_u32 v{vt}, {64*i}, v0")
        a(f"v_mul_u32_u24 v{vt+1}, 205, v{vt}\nv_lshrrev_b32 v{vt+1}, 11, v{vt+1}")
        a(f"v_mul_u32_u24 v{vt+2}, 10, v{vt+1}\nv_sub_u32 v{vt+2}, v{vt}, v{vt+2}\nv_lshlrev_b32 v{vt+2}, 4, v{vt+2}")
        outs(i, vt + 1, vt + 2)

def tr160_addr(a, vd, vt):
    a(f"v_lshrrev_b32 v{vt}, 5, v0\nv_lshlrev_b32 v{vt}, 4, v{vt}")
    a(f"v_bfe_u32 v{vd}, v0, 2, 3\nv_add_u32 v{vt}, v{vt}, v{vd}")
    a(f"v_mul_u32_u24 v{vt}, 160, v{vt}\nv_and_b32 v{vd}, 3, v0\nv_lshl_add_u32 v{vd}, v{vd}, 3, v{vt}")

def k_pre():
    L = "pre_kernel"
    a = Asm(); head(a, L)
    WQ, WKV, HROW, GSL = 0, 102400, 131072, 131072 + 8 * 1344
    XF = 64
    a(f"s_lshl_b32 s35, s{S_TB}, 6\ns_lshr_b32 s36, s{S_HB}, 2\ns_lshl_b32 s36, s36, 5\ns_add_u32 s37, s35, s36")
    a(f"s_and_b32 s36, s{S_HB}, 3\ns_lshl_b32 s36, s36, 2\ns_add_u32 s37, s37, s36")
    a(f"s_and_b32 s36, s{S_W}, 3\ns_add_u32 s38, s37, s36\ns_lshr_b32 s36, s{S_W}, 2\ns_lshl_b32 s36, s36, 4\ns_add_u32 s38, s38, s36")
    a("s_mul_i32 s39, s38, 1280")
    a("v_lshlrev_b32 v1, 2, v0")
    a("v_lshlrev_b32 v22, 4, v0")
    a("v_and_b32 v23, 15, v0\nv_mul_u32_u24 v23, 1280, v23\nv_lshrrev_b32 v24, 4, v0\nv_lshl_add_u32 v23, v24, 4, v23")
    a("s_waitcnt lgkmcnt(0)")
    srd(a, 40, P_X, 0, 2048 * 1280)
    srd(a, 44, P_GW, 0, 1280)
    for j in range(5):
        a(f"buffer_load_dword v{2+j}, v1, s[40:43], s39 offen offset:{256*j}")
    for j in range(5):
        a(f"buffer_load_dword v{7+j}, v1, s[44:47], 0 offen offset:{256*j}")
    a(f"s_cmp_lt_u32 s{S_W}, 4\ns_cbranch_scc1 {L}_ldq")
    a(f"s_and_b32 s36, s{S_HB}, 1\ns_cmp_eq_u32 s36, 0\ns_cselect_b32 s48, s{P_WK}, s{P_WV}\ns_cselect_b32 s49, s{P_WK+1}, s{P_WV+1}")
    a("s_mov_b32 s50, 25600\ns_mov_b32 s51, 0x20000")
    a(f"s_sub_u32 s36, s{S_W}, 4\ns_lshl_b32 s36, s36, 10")
    for i in range(7):
        a(f"s_add_u32 m0, s36, {WKV}\ns_nop 0")
        a(f"buffer_load_dwordx4 v22, s[48:51], s36 offen lds")
        if i < 6: a("s_add_u32 s36, s36, 4096")
    a(f"s_cmp_ge_u32 s{S_W}, 6\ns_cbranch_scc1 {L}_ldh")
    a(f"s_lshr_b32 s36, s{S_HB}, 1\ns_lshl_b32 s36, s36, 4\ns_add_u32 s64, s35, s36\ns_mul_i32 s36, s64, 1280")
    for ks in range(20):
        a(f"buffer_load_dwordx4 {vr(XF+4*ks,4)}, v23, s[40:43], s36 offen offset:{64*ks}")
    a(f"s_waitcnt vmcnt(27)\ns_branch {L}_ln")
    a(f"{L}_ldh:\ns_waitcnt vmcnt(7)\ns_branch {L}_ln")
    a(f"{L}_ldq:")
    srd(a, 48, P_WQ, 0, 640 * 1280)
    a(f"s_mul_i32 s65, s{S_HB}, 160")
    def outs(i, vrho, vc):
        a(f"v_lshrrev_b32 v33, 1, v{vrho}\nv_xor_b32 v33, v33, v{vrho}\nv_and_b32 v33, 4, v33\nv_mul_u32_u24 v33, 3, v33\nv_xor_b32 v33, v33, v{vrho}")
        a(f"v_mul_u32_u24 v33, 1280, v33\nv_add3_u32 v{25+i}, v33, v{vc}, s65")
    w160_patterns(a, 30, outs)
    a(f"s_lshl_b32 s36, s{S_W}, 4\ns_add_u32 s36, s35, s36\ns_mul_i32 s36, s36, 1280")
    a(f"s_mul_i32 s66, s{S_W}, 40960\ns_mul_i32 s67, s{S_W}, 5120")
    for c in range(5):
        for i in range(5):
            a(f"s_add_u32 m0, s67, {WQ + c*20480 + i*1024}\ns_nop 0")
            a(f"buffer_load_dwordx4 v{25+i}, s[48:51], s66 offen lds")
        for ks in range(4 * c, 4 * c + 4):
            a(f"buffer_load_dwordx4 {vr(XF+4*ks,4)}, v23, s[40:43], s36 offen offset:{64*ks}")
        if c < 4: a(f"s_add_u32 s66, s66, {4*40960}")
    a("s_waitcnt vmcnt(45)")
    a(f"{L}_ln:")
    X, T = 12, 36
    for j in range(5):
        a(f"v_lshlrev_b32 v{X+2*j}, 16, v{2+j}\nv_and_b32 v{X+2*j+1}, 0xffff0000, v{2+j}")
    for j in range(5):
        a(f"v_lshlrev_b32 v{T+2*j}, 16, v{7+j}\nv_and_b32 v{T+2*j+1}, 0xffff0000, v{7+j}")
    for j in range(5):
        a(f"v_pk_mul_f32 {vr(T+2*j,2)}, {vr(T+2*j,2)}, {vr(X+2*j,2)}")
    for j in range(5):
        a(f"v_cvt_pk_bf16_f32 v{7+j}, v{T+2*j}, v{T+2*j+1}")
    for j in range(5):
        a(f"v_lshlrev_b32 v{T+2*j}, 16, v{7+j}\nv_and_b32 v{T+2*j+1}, 0xffff0000, v{7+j}")
    a(f"v_pk_add_f32 v[46:47], {vr(X,2)}, {vr(X+2,2)}\nv_pk_add_f32 v[48:49], {vr(T,2)}, {vr(T+2,2)}")
    for j in range(2, 5):
        a(f"v_pk_add_f32 v[46:47], v[46:47], {vr(X+2*j,2)}\nv_pk_add_f32 v[48:49], v[48:49], {vr(T+2*j,2)}")
    a("v_add_f32 v46, v46, v47\nv_add_f32 v48, v48, v49")
    wave_sum(a, [46, 48])
    a("s_nop 0\nv_readlane_b32 s68, v46, 63\nv_readlane_b32 s69, v48, 63")
    a(f"v_mov_b32 v50, {fbits(1.0/640)}\ns_nop 0\nv_mul_f32 v46, s68, v50")
    for j in range(5):
        a(f"v_pk_add_f32 {vr(T+2*j,2)}, {vr(X+2*j,2)}, v[46:47] op_sel_hi:[1,0] neg_lo:[0,1] neg_hi:[0,1]")
    a(f"v_pk_mul_f32 v[48:49], {vr(T,2)}, {vr(T,2)}")
    for j in range(1, 5):
        a(f"v_pk_fma_f32 v[48:49], {vr(T+2*j,2)}, {vr(T+2*j,2)}, v[48:49]")
    a("v_add_f32 v48, v48, v49")
    a("v_cvt_pk_bf16_f32 v52, v46, s69\nv_lshlrev_b32 v46, 16, v52\nv_and_b32 v53, 0xffff0000, v52")
    wave_sum(a, [48])
    for j in range(5):
        a(f"v_pk_add_f32 {vr(T+2*j,2)}, {vr(X+2*j,2)}, v[46:47] op_sel_hi:[1,0] neg_lo:[0,1] neg_hi:[0,1]")
    a("v_readlane_b32 s68, v48, 63")
    for j in range(5):
        a(f"v_cvt_pk_bf16_f32 v{2+j}, v{T+2*j}, v{T+2*j+1}")
    a("v_mul_f32 v48, s68, v50")
    a(f"v_mul_f32 v53, {fbits(-math.log2(math.e))}, v53")
    a("v_cvt_pk_bf16_f32 v48, v48, v48\nv_exp_f32 v53, v53\nv_lshlrev_b32 v48, 16, v48")
    a(f"v_add_f32 v48, {fbits(1e-5)}, v48\nv_add_f32 v53, 1.0, v53")
    a("v_cvt_pk_bf16_f32 v48, v48, v48\nv_rcp_f32 v53, v53\nv_lshlrev_b32 v48, 16, v48\nv_sqrt_f32 v48, v48")
    a("v_cvt_pk_bf16_f32 v54, v53, v53\nv_cvt_pk_bf16_f32 v48, v48, v48\nv_lshlrev_b32 v54, 16, v54\nv_lshlrev_b32 v48, 16, v48")
    a("v_rcp_f32 v48, v48\nv_sub_f32 v55, 1.0, v54\nv_cvt_pk_bf16_f32 v55, v55, v55\nv_lshlrev_b32 v55, 16, v55")
    for j in range(5):
        a(f"v_lshlrev_b32 v{T+2*j}, 16, v{2+j}\nv_and_b32 v{T+2*j+1}, 0xffff0000, v{2+j}")
    for j in range(5):
        a(f"v_pk_mul_f32 {vr(T+2*j,2)}, {vr(T+2*j,2)}, v[48:49] op_sel_hi:[1,0]")
    for j in range(5):
        a(f"v_cvt_pk_bf16_f32 v{2+j}, v{T+2*j}, v{T+2*j+1}")
    a(f"s_mul_i32 s36, s{S_W}, 1344\ns_add_u32 s36, s36, {HROW}\nv_add_u32 v46, s36, v1")
    for j in range(5):
        a(f"ds_write_b32 v46, v{2+j} offset:{256*j}")
    a(f"s_lshl_b32 s36, s{S_W}, 3\ns_add_u32 s36, s36, {GSL}\nv_mov_b32 v47, s36\nds_write_b64 v47, v[54:55]")
    a(f"s_cmp_lt_u32 s{S_W}, 4\ns_cbranch_scc1 {L}_q")
    a("s_waitcnt vmcnt(0) lgkmcnt(0)\ns_barrier")
    a(f"s_cmp_lt_u32 s{S_W}, 6\ns_cbranch_scc1 {L}_kv")
    srd(a, 52, P_WS, HF, 64 * 40960)
    a(f"v_bfe_u32 v2, v0, 2, 2\nv_mul_u32_u24 v2, 1344, v2\nv_lshrrev_b32 v3, 4, v0\nv_lshl_add_u32 v2, v3, 5, v2\nv_and_b32 v4, 3, v0\nv_lshl_add_u32 v2, v4, 3, v2")
    a(f"s_sub_u32 s36, s{S_W}, 6\ns_mul_i32 s64, s36, 640\ns_add_u32 s64, s64, {HROW}\nv_add_u32 v2, s64, v2")
    for u in range(5):
        a(f"ds_read_b64_tr_b16 {vr(64+4*u,2)}, v2 offset:{128*u}\nds_read_b64_tr_b16 {vr(66+4*u,2)}, v2 offset:{128*u + 4*1344}")
    a("v_and_b32 v4, 15, v0\nv_lshlrev_b32 v4, 4, v4\nv_lshl_add_u32 v4, v3, 10, v4")
    a(f"s_lshr_b32 s64, s37, 5\ns_mul_i32 s64, s64, 40960\ns_and_b32 s65, s{S_HB}, 3\ns_lshl_b32 s65, s65, 8\ns_add_u32 s64, s64, s65")
    a(f"s_mul_i32 s36, s36, 20480\ns_add_u32 s64, s64, s36")
    a(f"v_and_b32 v5, 7, v0\nv_lshlrev_b32 v6, 3, v5\nv_add_u32 v6, {GSL}, v6\nds_read_b64 v[8:9], v6")
    for u in range(5):
        a(f"s_waitcnt lgkmcnt({9-2*u})")
        a(f"buffer_store_dwordx4 {vr(64+4*u,4)}, v4, s[52:55], s64 offen")
        if u < 4: a("s_add_u32 s64, s64, 4096")
    srd(a, 56, P_WS, GV, 2048 * 8)
    a("v_and_b32 v6, 3, v5\nv_lshrrev_b32 v5, 2, v5\nv_lshl_add_u32 v6, v5, 4, v6\nv_add_u32 v6, s37, v6\nv_lshlrev_b32 v6, 3, v6")
    a("s_mov_b64 exec, 0xff\ns_waitcnt lgkmcnt(0)\nbuffer_store_dwordx2 v[8:9], v6, s[56:59], 0 offen")
    a("s_endpgm")
    a(f"{L}_kv:")
    srd(a, 52, P_WS, KF, 64 * KT)
    a("v_lshrrev_b32 v3, 4, v0\nv_lshlrev_b32 v2, 3, v3\nv_bfe_u32 v4, v0, 2, 2\nv_add_u32 v2, v2, v4\nv_mul_u32_u24 v2, 40, v2")
    a(f"v_and_b32 v4, 3, v0\nv_lshlrev_b32 v4, 3, v4\ns_cmp_eq_u32 s{S_W}, 5\ns_cselect_b64 vcc, -1, 0\nv_cndmask_b32 v4, v4, 32, vcc".replace("v4, v4, 32, vcc", "v4, v4, v5, vcc").replace("s_cmp_eq", "v_mov_b32 v5, 32\ns_cmp_eq"))
    a(f"v_add_u32 v2, v2, v4\nv_add_u32 v2, {WKV}, v2")
    a("v_and_b32 v6, 15, v0")
    a(f"s_lshr_b32 s65, s64, 5\ns_mul_i32 s65, s65, {KT}\ns_bfe_u32 s66, s64, 0x10004")
    WF = 144
    def kvchain(isv):
        def rd(ks):
            b = WF + 4 * (ks % 6)
            a(f"ds_read_b64_tr_b16 {vr(b,2)}, v2 offset:{1280*ks}\nds_read_b64_tr_b16 {vr(b+2,2)}, v2 offset:{1280*ks+160}")
        for ks in range(5): rd(ks)
        for ks in range(20):
            if ks + 5 < 20: rd(ks + 5)
            left = min(19, ks + 5) - ks
            a(f"s_waitcnt lgkmcnt({2*left})")
            w = vr(WF + 4 * (ks % 6), 4); x = vr(XF + 4 * ks, 4)
            acc = 8 + 4 * (ks & 1)
            c = "0" if ks < 2 else vr(acc, 4)
            a(f"v_mfma_f32_16x16x32_bf16 {vr(acc,4)}, {x if isv else w}, {w if isv else x}, {c}")
        a.nop(8)
        a("v_pk_add_f32 v[8:9], v[8:9], v[12:13]\nv_pk_add_f32 v[10:11], v[10:11], v[14:15]")
        a("v_cvt_pk_bf16_f32 v8, v8, v9\nv_cvt_pk_bf16_f32 v9, v10, v11")
    a(f"s_and_b32 s36, s{S_HB}, 1\ns_cbranch_scc1 {L}_v")
    kvchain(False)
    a("s_lshl_b32 s66, s66, 4\nv_add_u32 v6, s66, v6")
    a(f"s_cmp_eq_u32 s{S_W}, 5\ns_cbranch_scc1 {L}_kt")
    a("v_lshrrev_b32 v4, 1, v3\nv_lshlrev_b32 v4, 9, v4\nv_lshl_add_u32 v4, v6, 4, v4\nv_and_b32 v5, 1, v3\nv_lshl_add_u32 v4, v5, 3, v4")
    a("buffer_store_dwordx2 v[8:9], v4, s[52:55], s65 offen\ns_endpgm")
    a(f"{L}_kt:")
    a(f"v_lshlrev_b32 v4, 3, v6\nv_add_u32 v4, {K_T}, v4\ns_mov_b64 exec, 0x10000\nv_mov_b32 v4, {K_C}\nv_mov_b32 v8, 0x3f803f80\nv_mov_b32 v9, 0x00003f80")
    a("s_mov_b64 exec, 0x1ffff\nbuffer_store_dwordx2 v[8:9], v4, s[52:55], s65 offen\ns_endpgm")
    a(f"{L}_v:")
    kvchain(True)
    a(f"s_mul_i32 s66, s66, 672\ns_add_u32 s65, s65, s66\ns_add_u32 s65, s65, {V_A}")
    a("v_lshrrev_b32 v4, 1, v3\nv_mul_u32_u24 v4, 336, v4\nv_lshl_add_u32 v4, v6, 4, v4\nv_and_b32 v5, 1, v3\nv_lshl_add_u32 v4, v5, 3, v4")
    a(f"s_cmp_eq_u32 s{S_W}, 5\ns_cbranch_scc1 {L}_vt")
    a("buffer_store_dwordx2 v[8:9], v4, s[52:55], s65 offen\ns_endpgm")
    a(f"{L}_vt:")
    a("s_mov_b32 exec_lo, 0x00100010\ns_mov_b32 exec_hi, 0x00100010\nv_mov_b32 v8, 0x3f803f80\nv_mov_b32 v9, 0x3f803f80")
    a("s_mov_b32 exec_lo, 0x001f001f\ns_mov_b32 exec_hi, 0x001f001f\nbuffer_store_dwordx2 v[8:9], v4, s[52:55], s65 offen offset:256\ns_endpgm")
    a(f"{L}_q:")
    a("s_waitcnt lgkmcnt(0)\ns_barrier")
    tr160_addr(a, 2, 3)
    a("v_add_u32 v3, 51200, v2")
    WB, ACC = 144, 184
    def rdq(ks):
        for b in range(5):
            r = WB + 20 * (ks & 1) + 4 * b
            ad, off = (2, ks * 5120) if ks < 10 else (3, (ks - 10) * 5120)
            a.ds(f"ds_read_b64_tr_b16 {vr(r,2)}, v{ad} offset:{off + 32*b}", ("w", ks, b))
            a.ds(f"ds_read_b64_tr_b16 {vr(r+2,2)}, v{ad} offset:{off + 32*b + 1280}", ("w", ks, b))
    for c in range(5):
        a(f"s_waitcnt vmcnt({9*(4-c)})\ns_barrier")
        rdq(4 * c)
        for ks in range(4 * c, 4 * c + 4):
            a.wait(lg="all")
            if ks < 4 * c + 3: rdq(ks + 1)
            for b in range(5):
                cc = "0" if ks == 0 else vr(ACC + 4 * b, 4)
                a(f"v_mfma_f32_16x16x32_bf16 {vr(ACC+4*b,4)}, {vr(WB+20*(ks&1)+4*b,4)}, {vr(XF+4*ks,4)}, {cc}")
    srd(a, 52, P_WS, QF, 256 * 10240)
    a(f"s_mul_i32 s64, s2, 10240\ns_lshr_b32 s36, s{S_W}, 1\ns_mul_i32 s36, s36, 5120\ns_add_u32 s64, s64, s36")
    a(f"s_and_b32 s36, s{S_W}, 1\ns_lshl_b32 s36, s36, 4\nv_and_b32 v4, 15, v0\nv_add_u32 v4, s36, v4\nv_lshrrev_b32 v5, 4, v0")
    a(f"s_mov_b32 s66, {fbits(QSCALE)}\ns_mov_b32 s67, s66")
    for b in range(5):
        a(f"v_add_u32 v6, {4*b}, v5\nv_mul_u32_u24 v7, 52, v6\nv_lshrrev_b32 v7, 8, v7\nv_mul_u32_u24 v8, 5, v7\nv_sub_u32 v8, v6, v8")
        a("v_mul_u32_u24 v7, 1280, v7\nv_lshrrev_b32 v9, 1, v8\nv_lshl_add_u32 v7, v9, 9, v7\nv_and_b32 v9, 1, v8\nv_lshl_add_u32 v7, v9, 3, v7")
        a(f"v_lshrrev_b32 v9, 2, v8\nv_sub_u32 v9, 4, v9\nv_lshl_add_u32 v{10+b}, v4, v9, v7")
    for b in range(5):
        r = ACC + 4 * b
        a(f"v_pk_mul_f32 {vr(r,2)}, {vr(r,2)}, s[66:67]\nv_pk_mul_f32 {vr(r+2,2)}, {vr(r+2,2)}, s[66:67]")
        a(f"v_cvt_pk_bf16_f32 v{r}, v{r}, v{r+1}\nv_cvt_pk_bf16_f32 v{r+1}, v{r+2}, v{r+3}")
        a(f"buffer_store_dwordx2 {vr(r,2)}, v{10+b}, s[52:55], s64 offen")
    a(f"{L}_end:\ns_endpgm")
    return a, L, 256, GSL + 64

RING, SCR, CNT = 0, 65536, 147456
LDS_MAIN = CNT + 256
C_G1A, C_G1B, C_ATT, C_BAD, C_MAX = CNT, CNT + 4, CNT + 8, CNT + 12, CNT + 16
_uid = [0]
def lds_arrive(a, cnt, va, vt):
    a(f"v_mov_b32 v{va}, {cnt}\nv_mov_b32 v{vt}, 1\ns_waitcnt lgkmcnt(0)\ns_mov_b64 exec, 1\nds_add_u32 v{va}, v{vt}\ns_mov_b64 exec, -1")
    a.lg = []
def lds_spin(a, cnt, target, va, vt, sleep=0):
    _uid[0] += 1; u = _uid[0]
    a(f"v_mov_b32 v{va}, {cnt}\ns_mov_b32 s95, 0x40000")
    a(f"L_spin{u}:\nds_read_b32 v{vt}, v{va}\ns_waitcnt lgkmcnt(0)\nv_readfirstlane_b32 s94, v{vt}\ns_nop 0\ns_cmp_ge_u32 s94, {target}\ns_cbranch_scc1 L_spun{u}")
    if sleep: a(f"s_sleep {sleep}")
    a(f"s_sub_u32 s95, s95, 1\ns_cbranch_scc0 L_spin{u}\nL_spun{u}:")
    a.lg = []

G_DMA, G_TR, G_ACT, G_ACC, G_AR, G_W = 1, 5, 9, 16, 96, 176
D = 4
def gemm_addr(a, sgw):
    a(f"v_lshrrev_b32 v11, 2, v0")
    a(f"v_lshlrev_b32 v12, 7, v11\nv_and_b32 v13, 3, v0\nv_lshl_add_u32 v12, v13, 3, v12\ns_lshl_b32 s36, s{sgw}, 14\nv_add_u32 v12, s36, v12")
    a(f"v_bfe_u32 v13, v0, 3, 2")
    for cb in range(4):
        a(f"v_xor_b32 v14, {cb}, v13\nv_lshl_add_u32 v{G_TR+cb}, v14, 5, v12")
    a(f"v_lshlrev_b32 v{G_ACT}, 4, v0\nv_add_u32 v{G_ACT+1}, 4096, v{G_ACT}")
def gemm_dma_addr(a, stride):
    a(f"v_lshrrev_b32 v11, 3, v0\nv_bfe_u32 v12, v0, 4, 2\nv_lshlrev_b32 v12, 1, v12\nv_and_b32 v13, 7, v0\nv_xor_b32 v12, v12, v13")
    a(f"v_mul_u32_u24 v11, {stride}, v11\nv_lshl_add_u32 v{G_DMA}, v12, 4, v11")
    for i in range(1, 4):
        a(f"v_add_u32 v{G_DMA+i}, {i*(8*stride-1024)}, v{G_DMA}")

class Gemm:
    def __init__(self, a, name, nsteps, wsrd, asrd, s_w, s_a, s_m0, wstep, astep, w_is_a, amods=""):
        self.__dict__.update(locals())
    def dma(self, s):
        a = self.a
        a(f"s_add_u32 m0, s{self.s_m0}, {(s % D)*4096}")
        if s > 0: a(f"s_add_u32 s{self.s_w}, s{self.s_w}, {self.wstep}")
        else: a("s_nop 0")
        for i in range(4):
            a.vmem(f"buffer_load_dwordx4 v{G_DMA+i}, {sr(self.wsrd,4)}, s{self.s_w} offen offset:{1024*i} lds", (self.name, "w", s))
    def act(self, s, b):
        a = self.a
        if b == 0 and s > 0: a(f"s_add_u32 s{self.s_a}, s{self.s_a}, {self.astep}")
        r = G_AR + 20 * (s % D) + 4 * b
        ad, off = (G_ACT, 1024 * b) if b < 4 else (G_ACT + 1, 0)
        a.vmem(f"buffer_load_dwordx4 {vr(r,4)}, v{ad}, {sr(self.asrd,4)}, s{self.s_a} offen offset:{off}{self.amods}", (self.name, "a", s))
    def rd(self, s, cb):
        a = self.a
        r = G_W + 16 * (s & 1) + 4 * cb
        a.ds(f"ds_read_b64_tr_b16 {vr(r,2)}, v{G_TR+cb} offset:{(s % D)*4096}", (self.name, s))
        a.ds(f"ds_read_b64_tr_b16 {vr(r+2,2)}, v{G_TR+cb} offset:{(s % D)*4096 + 2048}", (self.name, s))
    def pro_w(self):
        for s in range(D): self.dma(s)
    def pro_a(self):
        for s in range(D):
            for b in range(5): self.act(s, b)
    def pro_both(self):
        for s in range(D):
            self.dma(s)
            for b in range(5): self.act(s, b)
    def run(self, after_last_read=None):
        a = self.a; n = self.nsteps
        a.wait(vm=(self.name, "w", 0))
        for cb in range(4): self.rd(0, cb)
        for s in range(n):
            need = [(self.name, "a", s)] + ([(self.name, "w", s + 1)] if s + 1 < n else [])
            a.wait(vm=need, lg=(self.name, s))
            if s + D < n: self.dma(s + D)
            if s == n - 1 and after_last_read: after_last_read()
            for b in range(5):
                for cb in range(4):
                    acc = vr(G_ACC + 4 * (4 * b + cb), 4)
                    w = vr(G_W + 16 * (s & 1) + 4 * cb, 4); x = vr(G_AR + 20 * (s % D) + 4 * b, 4)
                    a(f"v_mfma_f32_16x16x32_bf16 {acc}, {w if self.w_is_a else x}, {x if self.w_is_a else w}, {'0' if s == 0 else acc}")
                    if cb == 1 and b < 4 and s + 1 < n: self.rd(s + 1, b)
                if s + D < n: self.act(s + D, b)

def gelu8(a, r, t):
    for j in range(0, 8, 2): a(f"v_pk_mul_f32 {vr(t+j,2)}, {vr(r+j,2)}, {vr(r+j,2)}")
    for j in range(0, 8, 2): a(f"v_pk_fma_f32 {vr(t+j,2)}, {vr(t+j,2)}, s[70:71], v[14:15]")
    for j in range(0, 8, 2): a(f"v_pk_mul_f32 {vr(t+j,2)}, {vr(t+j,2)}, {vr(r+j,2)}")
    for j in range(8): a(f"v_exp_f32 v{t+j}, v{t+j}")
    for j in range(0, 8, 2): a(f"v_pk_add_f32 {vr(t+j,2)}, {vr(t+j,2)}, 1.0 op_sel_hi:[1,0]")
    for j in range(8): a(f"v_rcp_f32 v{t+j}, v{t+j}")
    for j in range(0, 8, 2): a(f"v_pk_mul_f32 {vr(r+j,2)}, {vr(r+j,2)}, {vr(t+j,2)}")

def gemm1(a, L, smods=""):
    a(f"s_and_b32 s35, s2, 7\ns_lshr_b32 s36, s2, 3")
    a("s_and_b32 s64, s35, 1\ns_lshl_b32 s64, s64, 2\ns_and_b32 s65, s36, 3\ns_add_u32 s64, s64, s65")
    a("s_lshr_b32 s65, s35, 1\ns_mul_i32 s65, s65, 7\ns_lshr_b32 s36, s36, 2\ns_add_u32 s65, s65, s36")
    a(f"s_cmp_ge_u32 s36, 7\ns_cbranch_scc1 {L}_nog1\ns_cmp_ge_u32 s65, 27\ns_cbranch_scc1 {L}_nog1")
    srd(a, 40, P_W1, 0, 2048 * 3456)
    srd(a, 44, P_WS, HF, 64 * 40960)
    srd(a, 48, P_B1, 0, 3456)
    gemm_dma_addr(a, 3456)
    a(f"s_mul_i32 s66, s37, {32*3456}\ns_lshl_b32 s36, s65, 7\ns_add_u32 s66, s66, s36")
    a(f"s_mul_i32 s67, s37, 40960\ns_mul_i32 s36, s64, 5120\ns_add_u32 s67, s67, s36")
    g = Gemm(a, "g1", 16, 40, 44, 66, 67, 38, 4 * 32 * 3456, 4 * 40960, True)
    a("s_and_b32 s36, s37, 1\ns_lshl_b32 s36, s36, 6\ns_lshl_b32 s68, s65, 7\ns_add_u32 s68, s68, s36\nv_lshrrev_b32 v11, 4, v0\nv_lshlrev_b32 v11, 3, v11")
    a.vmem("buffer_load_dwordx2 v[208:209], v11, s[48:51], s68 offen", "b1")
    a.vmem("buffer_load_dwordx2 v[210:211], v11, s[48:51], s68 offen offset:32", "b1")
    g.pro_both()
    g.run()
    a(f"s_mul_i32 s36, s37, 20480\ns_add_u32 s36, s36, {SCR}\nv_add_u32 v11, s36, v{G_ACT}")
    for j in range(4):
        a(f"v_lshlrev_b32 v{212+2*j}, 16, v{208+j}\nv_and_b32 v{213+2*j}, 0xffff0000, v{208+j}")
    for blk in range(20):
        a.ds(f"ds_write_b128 v11, {vr(G_ACC+4*blk,4)} offset:{1024*blk}")
    lds_arrive(a, C_G1A, 12, 13)
    k = 2.0 * math.sqrt(2.0 / math.pi) * math.log2(math.e)
    a(f"s_mov_b32 s70, {fbits(-k*0.044715)}\ns_mov_b32 s71, s70\nv_mov_b32 v14, {fbits(-k)}\nv_mov_b32 v15, v14")
    srd(a, 52, P_WS, GF, 54 * 40960)
    a(f"s_lshl_b32 s36, s37, 11\ns_add_u32 s36, s36, {SCR}\nv_add_u32 v11, s36, v{G_ACT}\nv_add_u32 v220, 40960, v11")
    a("s_lshl_b32 s69, s65, 1\ns_and_b32 s36, s37, 1\ns_add_u32 s69, s69, s36\ns_mul_i32 s69, s69, 40960")
    a("s_mul_i32 s36, s64, 5120\ns_add_u32 s69, s69, s36\ns_lshr_b32 s36, s37, 1\ns_lshl_b32 s36, s36, 10\ns_add_u32 s69, s69, s36")
    lds_spin(a, C_G1A, 4, 12, 13, sleep=1)
    R = 16
    def rdu(r):
        for src in range(4):
            for e in range(2):
                ad = 11 if src < 2 else 220
                a.ds(f"ds_read_b128 {vr(R+32*r+8*src+4*e,4)}, v{ad} offset:{(src&1)*20480 + 8192*r + 1024*e}", ("u", r))
    def fin(r):
        b = R + 32 * r
        for j in range(0, 8, 2):
            a(f"v_pk_add_f32 {vr(b+j,2)}, {vr(b+j,2)}, {vr(b+8+j,2)}\nv_pk_add_f32 {vr(b+16+j,2)}, {vr(b+16+j,2)}, {vr(b+24+j,2)}")
        for j in range(0, 8, 2):
            a(f"v_pk_add_f32 {vr(b+j,2)}, {vr(b+j,2)}, {vr(212+j,2)}")
        for j in range(0, 8, 2):
            a(f"v_pk_add_f32 {vr(b+j,2)}, {vr(b+j,2)}, {vr(b+16+j,2)}")
        gelu8(a, b, b + 8)
        for j in range(4):
            a(f"v_cvt_pk_bf16_f32 v{b+j}, v{b+2*j}, v{b+2*j+1}")
        a.vmem(f"buffer_store_dwordx4 {vr(b,4)}, v{G_ACT + (r>>1)}, s[52:55], s69 offen offset:{2048*(r&1)}{smods}", "gst")
    rdu(0); a.wait(lg="all"); rdu(1)
    fin(0)
    a.wait(lg="all")
    a(f"s_cmp_ge_u32 s37, 2\ns_cbranch_scc1 {L}_g1two")
    rdu(2); a.wait(lg="all"); fin(2)
    a(f"{L}_g1two:")
    lds_arrive(a, C_G1B, 12, 13)
    fin(1)
    a(f"s_branch {L}_g1done\n{L}_nog1:")
    lds_arrive(a, C_G1B, 12, 13)
    a(f"{L}_g1done:")

A_IDX, A_K0, A_KT, A_V, A_G = 1, 2, 3, 4, 5
A_Q, A_S, A_KV, A_O, NBUF = 8, 56, 88, 144, 4
GAPS = (2, 2, 3, 6, 3)
def kv_load(a, buf, soff):
    b = A_KV + 14 * buf
    a(f"buffer_load_dwordx4 {vr(b,4)}, v{A_K0}, s[40:43], {soff} offen")
    a(f"buffer_load_dwordx2 {vr(b+4,2)}, v{A_KT}, s[40:43], {soff} offen")
    a(f"buffer_load_dwordx4 {vr(b+6,4)}, v{A_V}, s[40:43], {soff} offen offset:{V_A}")
    a(f"buffer_load_dwordx4 {vr(b+10,4)}, v{A_V}, s[40:43], {soff} offen offset:{V_B}")
def qk(buf, t, s):
    b = A_KV + 14 * buf
    return (f"v_mfma_f32_32x32x16_bf16 {vr(s,16)}, {vr(b,4)}, {vr(A_Q+6*t,4)}, 0",
            f"v_mfma_f32_32x32x8_bf16 {vr(s,16)}, {vr(b+4,2)}, {vr(A_Q+6*t+4,2)}, {vr(s,16)}")
def pv(buf, t, s, e):
    b = A_KV + 14 * buf
    return f"v_smfmac_f32_32x32x32_bf16 {vr(A_O+12*t,16)}, {vr(b+6+4*e,4)}, {vr(s+8*e,8)}, v{A_IDX}"
def period(a, j, t, last=False, extra=None):
    cur, oth = (A_S, A_S + 16) if t % 2 == 0 else (A_S + 16, A_S)
    pb = pv(j, t - 1, oth, 1) if t > 0 else pv((j - 1) % NBUF, 7, oth, 1)
    qa, qb = qk(j, t + 1, oth) if t < 7 else qk((j + 1) % NBUF, 0, oth)
    if last and t == 7: qa = qb = None
    i = 0
    for k, (n, m) in enumerate(zip(GAPS, (pb, qa, qb, pv(j, t, cur, 0), None))):
        for _ in range(n):
            a(f"v_exp_f32 v{cur+i}, v{cur+i}"); i += 1
            if extra and i in extra: a(extra[i])
        if m: a(m)

def attention(a, L, smods=""):
    a("s_setprio 1")
    a(f"s_mul_i32 s36, s{S_W}, {16*KT}\ns_add_u32 s36, s36, {KF}")
    srd(a, 40, P_WS, "s36", 16 * KT)
    a(f"s_mul_i32 s36, s2, 10240\ns_add_u32 s36, s36, {QF}")
    srd(a, 44, P_WS, "s36", 10240)
    srd(a, 48, P_WS, GV, 2048 * 8)
    a(f"v_lshlrev_b32 v{A_K0}, 4, v0\nv_and_b32 v6, 31, v0\nv_lshrrev_b32 v7, 5, v0")
    a(f"v_min_u32 v{A_KT}, 32, v0\nv_lshlrev_b32 v{A_KT}, 3, v{A_KT}\nv_add_u32 v{A_KT}, {K_T}, v{A_KT}")
    a(f"v_mul_u32_u24 v{A_V}, 336, v7\nv_lshl_add_u32 v{A_V}, v6, 4, v{A_V}\nv_cmp_lt_u32 vcc, 20, v6\nv_mov_b32 v{A_G}, 0x40000000\ns_nop 0\nv_cndmask_b32 v{A_V}, v{A_V}, v{A_G}, vcc")
    a(f"v_lshlrev_b32 v{A_S}, 3, v0\nv_add_u32 v{A_S}, 1024, v{A_S}\nv_cmp_lt_u32 vcc, 31, v0\ns_nop 1\nv_cndmask_b32 v{A_S}, v{A_S}, v{A_G}, vcc")
    a(f"s_lshl_b32 s37, s{S_W}, 1\ns_xor_b32 s37, s37, 6")
    kv_load(a, 0, "0")
    for t in range(8):
        a(f"s_xor_b32 s36, s37, {t}\ns_mul_i32 s36, s36, 1280")
        a(f"buffer_load_dwordx4 {vr(A_Q+6*t,4)}, v{A_K0}, s[44:47], s36 offen")
        a(f"buffer_load_dwordx2 {vr(A_Q+6*t+4,2)}, v{A_S}, s[44:47], s36 offen")
    a(f"s_lshr_b32 s36, s{S_W}, 1\ns_lshl_b32 s36, s36, 5\ns_lshl_b32 s38, s{S_TB}, 6\ns_add_u32 s36, s36, s38\ns_lshl_b32 s36, s36, 3\nv_lshlrev_b32 v{A_S+1}, 3, v6")
    a(f"buffer_load_dword v{A_G}, v{A_S+1}, s[48:51], s36 offen")
    a(f"v_mov_b32 v{A_IDX}, 0xdddddddd\ns_mov_b32 s39, 0")
    a(f"{L}_att_start:")
    a(f"s_mov_b32 s64, {KT}"); kv_load(a, 1, "s64")
    a(f"s_mov_b32 s64, {2*KT}"); kv_load(a, 2, "s64")
    for r in range(A_O, A_O + 100, 2): a(f"v_mov_b64 {vr(r,2)}, 0")
    for r in range(A_S + 24, A_S + 32, 2): a(f"v_mov_b64 {vr(r,2)}, 0")
    for r in range(A_KV + 14 * 3 + 10, A_KV + 14 * 3 + 14, 2): a(f"v_mov_b64 {vr(r,2)}, 0")
    a("s_mov_b32 s65, 3\ns_waitcnt vmcnt(8)")
    for m in qk(0, 0, A_S): a(m)
    a.nop(12)
    def keytile(j, last=False):
        for t in range(8):
            extra = {}
            if t == 1 and not last:
                x = Asm(); x(f"s_add_u32 s64, s64, {KT}"); kv_load(x, (j - 1) % NBUF, "s64")
                extra = {3: x.l[0] + "\n" + x.l[1], 6: x.l[2], 9: x.l[3], 12: x.l[4]}
            if t == 7 and not last:
                extra = {3: "s_waitcnt vmcnt(8)"}
            if last and t >= 2:
                o = A_O + 12 * (t - 2)
                extra = {3 + 3 * i: f"ds_write_b128 v6, {vr(o+4*i,4)} offset:{3072*(t-2) + 1024*i}" for i in range(3)}
            period(a, j, t, last, extra)
    a(".p2align 3")
    a(f"{L}_att_loop:")
    for j in range(3): keytile(j)
    a(f"s_cmp_eq_u32 s65, 0\ns_cbranch_scc1 {L}_att_last")
    keytile(3)
    a(f"s_sub_u32 s65, s65, 1\ns_branch {L}_att_loop")
    a(f"{L}_att_last:")
    lds_spin(a, C_G1B, 4, 6, 7)
    a(f"s_mul_i32 s36, s{S_W}, 18432\ns_add_u32 s36, s36, {SCR}\nv_add_u32 v6, s36, v{A_K0}")
    keytile(3, True)
    a.nop(2)
    a(pv(3, 7, A_S + 16, 1))
    lds_arrive(a, C_ATT, 6, 7)
    for j in (1, 2, 3):
        a(f"s_xor_b32 s36, s{S_W}, {j}\ns_mul_i32 s36, s36, 18432\ns_add_u32 s36, s36, {SCR + 3072*(6 ^ (2*j))}\nv_add_u32 v{A_S+j}, s36, v{A_K0}")
    a(f"s_mul_i32 s66, s39, 12\ns_add_u32 s66, s66, 4")
    lds_spin(a, C_ATT, "s66", 6, 7)
    a("s_waitcnt vmcnt(0)")
    P = A_KV
    for j in (1, 2, 3):
        for i in range(6):
            a.ds(f"ds_read_b128 {vr(P+24*(j-1)+4*i,4)}, v{A_S+j} offset:{1024*i}", ("p", j))
    O = A_O + 72
    for j in (1, 2, 3):
        a.wait(lg=("p", j))
        for i in range(0, 24, 2):
            a(f"v_pk_add_f32 {vr(O+i,2)}, {vr(O+i,2)}, {vr(P+24*(j-1)+i,2)}")
    T = A_S
    a(f"v_mov_b32 v{T}, v{O+8}\nv_mov_b32 v{T+2}, v{O+8}\nv_mov_b32 v{T+1}, v{O+20}\nv_mov_b32 v{T+4}, v{O+20}\ns_nop 0")
    a(f"v_permlane32_swap_b32 v{T}, v{T+2}\nv_permlane32_swap_b32 v{T+1}, v{T+4}")
    a(f"s_cmp_lg_u32 s39, 0\ns_cbranch_scc1 {L}_att_ok")
    a(f"s_mov_b32 s67, {fbits(2.0**-80)}\ns_mov_b32 s68, {fbits(2.0**80)}")
    a(f"v_cmp_nle_f32 s[70:71], s67, v{T+2}\nv_cmp_nge_f32 s[72:73], s68, v{T+2}\nv_cmp_nle_f32 s[74:75], s67, v{T+4}\nv_cmp_nge_f32 s[76:77], s68, v{T+4}")
    a("s_nop 1\ns_or_b64 s[70:71], s[70:71], s[72:73]\ns_or_b64 s[74:75], s[74:75], s[76:77]\ns_or_b64 s[70:71], s[70:71], s[74:75]")
    a(f"s_cselect_b32 s36, 0x101, 1\nv_mov_b32 v6, {C_BAD}\nv_mov_b32 v7, s36\ns_mov_b64 exec, 1\nds_add_u32 v6, v7\ns_mov_b64 exec, -1")
    a(f"{L}_att_ok:")
    a(f"v_rcp_f32 v{T+2}, v{T+2}\nv_rcp_f32 v{T+4}, v{T+4}\ns_nop 0\nv_mul_f32 v{T+2}, v{T+2}, v{A_G}\nv_mul_f32 v{T+4}, v{T+4}, v{A_G}")
    for e in range(2):
        for i in range(0, 12, 2):
            a(f"v_pk_mul_f32 {vr(O+12*e+i,2)}, {vr(O+12*e+i,2)}, {vr(T+2+2*e,2)} op_sel_hi:[1,0]")
    for e in range(2):
        for i in range(4):
            a(f"v_cvt_pk_bf16_f32 v{P+4*e+i}, v{O+12*e+2*i}, v{O+12*e+2*i+1}")
        for i in range(2):
            a(f"v_cvt_pk_bf16_f32 v{P+8+2*e+i}, v{O+12*e+8+2*i}, v{O+12*e+9+2*i}")
    a(f"s_mul_i32 s36, s{S_TB}, 81920\ns_add_u32 s36, s36, {OF}")
    srd(a, 52, P_WS, "s36", 81920)
    a(f"v_and_b32 v{T}, 15, v0\nv_lshlrev_b32 v{T}, 4, v{T}\nv_bfe_u32 v{T+1}, v0, 4, 1\nv_lshl_add_u32 v{T}, v{T+1}, 10, v{T}")
    a(f"v_lshrrev_b32 v{T+1}, 5, v0\nv_lshl_add_u32 v{T+1}, v{T+1}, 8, v{T}")
    a(f"s_lshr_b32 s66, s{S_HB}, 1\ns_mul_i32 s66, s66, 20480\ns_lshr_b32 s36, s{S_W}, 1\ns_lshl_b32 s36, s36, 11\ns_add_u32 s66, s66, s36")
    a(f"s_and_b32 s36, s{S_HB}, 1\ns_lshl_b32 s36, s36, 1\ns_and_b32 s67, s{S_W}, 1\ns_add_u32 s36, s36, s67")
    a("s_lshl_b32 s67, s36, 12\ns_add_u32 s67, s67, s66\ns_lshl_b32 s36, s36, 8\ns_add_u32 s66, s66, s36\ns_add_u32 s66, s66, 16384")
    a(f"s_cmp_lg_u32 s39, 0\ns_cbranch_scc1 {L}_att_store")
    _uid[0] += 1; u = _uid[0]
    a(f"s_mov_b32 s95, 0x40000\nL_spin{u}:\nds_read_b32 v7, v6\ns_waitcnt lgkmcnt(0)\nv_readfirstlane_b32 s94, v7\ns_nop 0\ns_and_b32 s93, s94, 0xff\ns_cmp_ge_u32 s93, 4\ns_cbranch_scc1 L_spun{u}")
    a(f"s_sub_u32 s95, s95, 1\ns_cbranch_scc0 L_spin{u}\nL_spun{u}:")
    a(f"s_lshr_b32 s94, s94, 8\ns_cbranch_scc1 {L}_att_slow")
    a(f"{L}_att_store:")
    a(f"buffer_store_dwordx4 {vr(P,4)}, v{T+1}, s[52:55], s67 offen{smods}")
    a(f"buffer_store_dwordx4 {vr(P+4,4)}, v{T+1}, s[52:55], s67 offen offset:512{smods}")
    a(f"s_mov_b32 exec_hi, 0\nbuffer_store_dwordx4 {vr(P+8,4)}, v{T}, s[52:55], s66 offen{smods}\ns_mov_b64 exec, -1")
    a(f"s_branch {L}_att_done")
    a(f"{L}_att_slow:")
    M = A_O
    for t in range(8): a(f"v_mov_b32 v{M+t}, 0xff800000")
    a("s_mov_b32 s64, 0\ns_mov_b32 s39, 1")
    a(f"{L}_slow_loop:")
    kv_load(a, 0, "s64")
    a("s_waitcnt vmcnt(0)")
    for t in range(8):
        for m in qk(0, t, A_S): a(m)
        a.nop(16)
        for i in range(0, 16, 2):
            a(f"v_max3_f32 v{M+t}, v{M+t}, v{A_S+i}, v{A_S+i+1}")
    a(f"s_add_u32 s64, s64, {KT}\ns_cmp_lt_u32 s64, {16*KT}\ns_cbranch_scc1 {L}_slow_loop")
    a(f"v_lshlrev_b32 v{A_S}, 2, v0\ns_lshl_b32 s36, s{S_W}, 11\ns_add_u32 s36, s36, {SCR}\nv_add_u32 v{A_S}, s36, v{A_S}")
    for t in range(8):
        a(f"s_xor_b32 s36, s37, {t}\ns_lshl_b32 s36, s36, 8\nv_add_u32 v{A_S+1}, s36, v{A_S}\nds_write_b32 v{A_S+1}, v{M+t}")
    lds_arrive(a, C_ATT, 6, 7)
    lds_spin(a, C_ATT, 8, 6, 7)
    a(f"v_and_b32 v{A_S}, 31, v0\nv_lshlrev_b32 v{A_S}, 2, v{A_S}\nv_add_u32 v{A_S}, {SCR}, v{A_S}")
    for t in range(8):
        a(f"s_xor_b32 s36, s37, {t}\ns_lshl_b32 s36, s36, 8\nv_add_u32 v{A_S+1}, s36, v{A_S}")
        for w in range(4):
            a(f"ds_read2_b32 {vr(A_S+2+2*w,2)}, v{A_S+1} offset0:0 offset1:32\nv_add_u32 v{A_S+1}, 2048, v{A_S+1}")
        a("s_waitcnt lgkmcnt(0)")
        for i in range(0, 8, 2):
            a(f"v_max3_f32 v{M+t}, v{M+t}, v{A_S+2+i}, v{A_S+3+i}")
        m, h1, h2 = M + t, A_S + 2, A_S + 3
        a(f"v_sub_f32 v{m}, 0, v{m}\nv_and_b32 v{h1}, 0xffff0000, v{m}\nv_sub_f32 v{m}, v{m}, v{h1}\nv_and_b32 v{h2}, 0xffff0000, v{m}\nv_sub_f32 v{m}, v{m}, v{h2}")
        a(f"v_lshrrev_b32 v{h1}, 16, v{h1}\nv_or_b32 v{h1}, v{h1}, v{h2}\nv_lshrrev_b32 v{m}, 16, v{m}")
        a(f"s_mov_b32 exec_lo, 0\nv_mov_b32 v{A_Q+6*t+4}, v{h1}\nv_mov_b32 v{A_Q+6*t+5}, v{m}\ns_mov_b32 exec_lo, -1")
    lds_arrive(a, C_ATT, 6, 7)
    lds_spin(a, C_ATT, 12, 6, 7)
    kv_load(a, 0, "0")
    a(f"s_branch {L}_att_start")
    a(f"{L}_att_done:")

def k_main():
    L = "main_kernel"
    a = Asm(); head(a, L)
    a(f"v_lshlrev_b32 v1, 2, v0\nv_add_u32 v1, {CNT}, v1\nv_mov_b32 v2, 0\nds_write_b32 v1, v2")
    a("s_waitcnt lgkmcnt(0)\ns_barrier")
    a(f"s_cmp_lt_u32 s{S_W}, 4\ns_cbranch_scc0 {L}_gemm")
    attention(a, L)
    a("s_endpgm")
    a(f"{L}_gemm:")
    a(f"s_sub_u32 s37, s{S_W}, 4\ns_lshl_b32 s38, s37, 14")
    gemm_addr(a, 37)
    gemm1(a, L)
    a(f"{L}_end:\ns_endpgm")
    return a, L, 256, LDS_MAIN

def gemm2(a, L, lmods=""):
    srd(a, 40, P_W2, 0, 1728 * 4096)
    srd(a, 44, P_WS, GF, 54 * 40960)
    srd(a, 48, P_WS, GV, 2048 * 8)
    srd(a, 52, P_B2, 0, 4096)
    srd(a, 56, P_WO, 0, 640 * 1280)
    a(f"s_mul_i32 s36, s{S_TB}, 81920\ns_add_u32 s36, s36, {OF}")
    srd(a, 60, P_WS, "s36", 81920)
    gemm_dma_addr(a, 4096)
    a(f"s_lshl_b32 s66, s37, 17\ns_lshl_b32 s36, s{S_TB}, 7\ns_add_u32 s66, s66, s36")
    a(f"s_mul_i32 s67, s37, 40960\ns_mul_i32 s36, s{S_HB}, 5120\ns_add_u32 s67, s67, s36")
    g = Gemm(a, "g2", 14, 40, 44, 66, 67, 38, 4 * 32 * 4096, 4 * 40960, False, lmods)
    OM = 208
    a(f"v_and_b32 v11, 15, v0\nv_lshlrev_b32 v12, 3, v11\nv_lshlrev_b32 v11, 1, v11\ns_lshl_b32 s68, s{S_TB}, 9\ns_lshl_b32 s69, s{S_TB}, 7")
    for cb in range(4):
        a.vmem(f"buffer_load_dword v{OM+2*cb}, v12, s[48:51], s68 offen offset:{128*cb+4}", "om")
        a.vmem(f"buffer_load_ushort v{OM+2*cb+1}, v11, s[52:55], s69 offen offset:{32*cb}", "om")
    g.pro_both()
    WM, WT, WA = 216, 221, 226
    a(f"s_mul_i32 s70, s{S_HB}, 160")
    def outs(i, vrho, vc):
        a(f"v_lshrrev_b32 v14, 4, v{vrho}\nv_lshl_add_u32 v14, v14, 2, v{vrho}\nv_mul_u32_u24 v14, 1280, v14\nv_add3_u32 v{WM+i}, v14, v{vc}, s70")
        a(f"v_lshrrev_b32 v14, 4, v{vrho}\nv_bfe_u32 v15, v{vrho}, 2, 1\nv_lshl_add_u32 v14, v14, 1, v15\nv_bfe_u32 v15, v{vrho}, 3, 1\nv_lshl_add_u32 v14, v14, 1, v15")
        a(f"v_mul_u32_u24 v14, 20, v14\nv_and_b32 v15, 3, v{vrho}\nv_add3_u32 v14, v14, v15, 16\nv_mul_u32_u24 v14, 1280, v14\nv_add3_u32 v{WT+i}, v14, v{vc}, s70")
    w160_patterns(a, 11, outs)
    tr160_addr(a, WA, 11)
    a(f"v_add_u32 v{WA}, s38, v{WA}\ns_mul_i32 s71, s37, {160*1280}")
    def wo_dma(i):
        if i < 4: a(f"s_add_u32 s72, s71, {40*1280*i}")
        for p in range(5):
            a(f"s_add_u32 m0, s38, {(i % 3)*5120 + 1024*p}\ns_nop 0")
            a.vmem(f"buffer_load_dwordx4 v{(WM if i < 4 else WT)+p}, s[56:59], {'s72' if i < 4 else 's71'} offen lds", ("wo", i))
    g.run(after_last_read=lambda: [wo_dma(i) for i in range(3)])
    a.wait(vm="om")
    for cb in range(4):
        a(f"v_lshlrev_b32 v{OM+2*cb+1}, 16, v{OM+2*cb+1}\nv_mul_f32 v{OM+2*cb+1}, v{OM+2*cb+1}, v{OM+2*cb}")
    a(f"s_cmp_eq_u32 s37, 0\ns_cbranch_scc1 {L}_keepb")
    for cb in range(4): a(f"v_mov_b32 v{OM+2*cb+1}, 0")
    a(f"{L}_keepb:")
    for b in range(5):
        for cb in range(4):
            r = G_ACC + 4 * (4 * b + cb)
            for h in (0, 2):
                a(f"v_pk_fma_f32 {vr(r+h,2)}, {vr(r+h,2)}, {vr(OM+2*cb,2)}, {vr(OM+2*cb,2)} op_sel:[0,0,1] op_sel_hi:[1,0,1]")
    WOF = [176, 196, 228, 176, 196]
    def wo_rd(i):
        for b in range(5):
            r = WOF[i] + 4 * b
            a.ds(f"ds_read_b64_tr_b16 {vr(r,2)}, v{WA} offset:{(i % 3)*5120 + 32*b}", ("wo", i))
            a.ds(f"ds_read_b64_tr_b16 {vr(r+2,2)}, v{WA} offset:{(i % 3)*5120 + 32*b + 1280}", ("wo", i))
    for i in range(3):
        a.wait(vm=("wo", i)); wo_rd(i); a.wait(lg="all")
        if i < 2: wo_dma(3 + i)
    return WOF, wo_rd

def wo_part(a, L, WOF, wo_rd, lmods=""):
    a("s_mul_i32 s72, s37, 20480")
    for i in range(5):
        if i: a("s_add_u32 s72, s72, 4096")
        for cb in range(4):
            a.vmem(f"buffer_load_dwordx4 {vr(G_AR+16*i+4*cb,4)}, v{G_ACT}, s[60:63], s72 offen offset:{1024*cb}{lmods}", ("o", i))
    for i in range(5):
        a.wait(vm=("o", i), lg=("wo", i))
        for b in range(5):
            for cb in range(4):
                acc = vr(G_ACC + 4 * (4 * b + cb), 4)
                a(f"v_mfma_f32_16x16x32_bf16 {acc}, {vr(WOF[i]+4*b,4)}, {vr(G_AR+16*i+4*cb,4)}, {acc}")
        if i < 2: wo_rd(3 + i)

def final_write(a):
    a(f"v_and_b32 v11, 15, v0\nv_mul_u32_u24 v11, 11, v11\nv_lshrrev_b32 v12, 5, v0\nv_add_u32 v11, v11, v12\nv_lshrrev_b32 v12, 4, v0\nv_lshlrev_b32 v12, 8, v12")
    a(f"s_mul_i32 s36, s37, 20480\ns_add_u32 s36, s36, {SCR}\nv_add_u32 v12, s36, v12")
    for b in range(5):
        a(f"v_add_u32 v13, {2*b}, v11\nv_and_b32 v13, 15, v13\nv_lshl_add_u32 v{G_DMA+b}, v13, 4, v12")
    for b in range(5):
        for cb in range(4):
            a.ds(f"ds_write_b128 v{G_DMA+b}, {vr(G_ACC+4*(4*b+cb),4)} offset:{1024*(4*b+cb)}")

def final_read(a, L, nw, swave):
    srd(a, 40, P_OUT, 0, 2048 * 1280)
    a(f"s_mul_i32 s64, s{S_TB}, {64*1280}\ns_mul_i32 s36, s{S_HB}, 160\ns_add_u32 s64, s64, s36")
    rounds = (10 + nw - 1) // nw
    for r in range(rounds):
        a(f"s_add_u32 s36, s{swave}, {r*nw}\ns_lshl_b32 s36, s36, 6\nv_add_u32 v2, s36, v0")
        a("v_mul_u32_u24 v3, 6554, v2\nv_lshrrev_b32 v3, 16, v3\nv_mul_u32_u24 v4, 10, v3\nv_sub_u32 v4, v2, v4")
        a(f"v_mul_u32_u24 v{8+3*r}, 1280, v3\nv_lshl_add_u32 v{8+3*r}, v4, 4, v{8+3*r}")
        a("v_and_b32 v5, 15, v3\nv_mul_u32_u24 v5, 11, v5\nv_add_u32 v5, v5, v4\nv_and_b32 v5, 15, v5\nv_lshlrev_b32 v5, 4, v5")
        a("v_lshrrev_b32 v3, 4, v3\nv_lshl_add_u32 v5, v3, 10, v5\nv_lshrrev_b32 v3, 1, v4\nv_lshl_add_u32 v5, v3, 12, v5\nv_and_b32 v3, 1, v4\nv_lshl_add_u32 v5, v3, 9, v5")
        a(f"v_add_u32 v{9+3*r}, {SCR}, v5\nv_add_u32 v{10+3*r}, {SCR+40960}, v5")
    a("s_waitcnt lgkmcnt(0)\ns_barrier"); a.lg = []
    for r in range(rounds):
        if (r + 1) * nw > 10:
            a(f"s_cmp_ge_u32 s{swave}, {10 - r*nw}\ns_cbranch_scc1 {L}_end")
        b = 32 + 32 * r
        for src in range(4):
            for e in range(2):
                a.ds(f"ds_read_b128 {vr(b+8*src+4*e,4)}, v{9+3*r+(src>>1)} offset:{(src&1)*20480 + 256*e}")
        a.wait(lg="all")
        for j in range(0, 8, 2):
            a(f"v_pk_add_f32 {vr(b+j,2)}, {vr(b+j,2)}, {vr(b+8+j,2)}\nv_pk_add_f32 {vr(b+16+j,2)}, {vr(b+16+j,2)}, {vr(b+24+j,2)}")
        for j in range(0, 8, 2):
            a(f"v_pk_add_f32 {vr(b+j,2)}, {vr(b+j,2)}, {vr(b+16+j,2)}")
        for j in range(4):
            a(f"v_cvt_pk_bf16_f32 v{b+j}, v{b+2*j}, v{b+2*j+1}")
        a(f"buffer_store_dwordx4 {vr(b,4)}, v{8+3*r}, s[40:43], s64 offen")

def k_fin():
    L = "fin_kernel"
    a = Asm(); head(a, L)
    a("s_waitcnt lgkmcnt(0)")
    a(f"s_mov_b32 s37, s{S_W}\ns_lshl_b32 s38, s37, 14")
    gemm_addr(a, 37)
    WOF, wo_rd = gemm2(a, L)
    wo_part(a, L, WOF, wo_rd)
    final_write(a)
    final_read(a, L, 4, 37)
    a(f"{L}_end:\ns_endpgm")
    return a, L, 256, LDS_MAIN

def build(path):
    ks = [(k_pre(), 512), (k_main(), 512), (k_fin(), 256)]
    hdr = open("cdna_kernels/" + NAME + ".s.ref").read().split("; Override launch")[0]
    out = hdr
    for (a, L, nv, lds), blk in ks:
        out += f"; @launch kernel={L} grid=(256,1,1) block=({blk},1,1) lds={lds}\n"
    out += '.amdgcn_target "amdgcn-amd-amdhsa--gfx950"\n.text\n'
    bad = 0
    for (a, L, nv, lds), blk in ks:
        for m in lint(a.l, L): print(m); bad += 1
        out += f".globl {L}\n" + a.text()
    out += '.section .rodata,"a"\n'
    for (a, L, nv, lds), blk in ks:
        out += desc(L, nv)
    open(path, "w").write(out)
    print("written", path, "lint issues:", bad)

if __name__ == "__main__":
    build(sys.argv[1] if len(sys.argv) > 1 else "cdna_kernels/" + NAME + ".s")
```

```python
import sys, math, os, struct
from asmlib import *

NAME = "gated_mix__grouped_kv_mqa__mixer_token_mlp__prompt"
L = NAME + "_kernel"
E = os.environ.get
HF, KF, OF, GF, FL = 0, 0x280000, 0x2B0000, 0x530000, 0x750000
F1, F2, F3, GEN, FLSZ = 0, 0x10000, 0x20000, 0x30000, 0x30100
KT = 2816
K_T, V_A, V_B, K_C = 1024, 1280, 2048, 1856
WQ, XA, WKV, HROW, CNT = 0, 40960, 122880, 148480, 159232
QST = HROW
RING, SCR = 0, 65536
LDS_BYTES = CNT + 256
C_R, C_G1A, C_G1B, C_ATT, C_BAD, C_NON = CNT, CNT + 4, CNT + 8, CNT + 12, CNT + 16, CNT + 20
P_X, P_WQ, P_WK, P_WV, P_WO, P_W1, P_B1, P_W2, P_B2, P_GW, P_OUT, P_DBG, P_WS = 4, 6, 8, 10, 12, 16, 18, 20, 22, 24, 26, 28, 30
S_W, S_TB, S_HB, S_NON = 32, 33, 34, 3
SF = 72
QSCALE = math.log2(math.e) / math.sqrt(20.0)
SC = " sc1"
def fbits(x):
    return "0x%08x" % struct.unpack("<I", struct.pack("<f", x))[0]

def srd(a, d, ptr, off, nbytes):
    if off == 0:
        a(f"s_mov_b32 s{d}, s{ptr}\ns_mov_b32 s{d+1}, s{ptr+1}")
    else:
        a(f"s_add_u32 s{d}, s{ptr}, {off}\ns_addc_u32 s{d+1}, s{ptr+1}, 0")
    a(f"s_mov_b32 s{d+2}, {nbytes}\ns_mov_b32 s{d+3}, 0x20000")

STAMP = False
ST = 0xA00000
def stamp(a, i):
    if not STAMP: return
    a(f"s_memrealtime s[96:97]\ns_memtime s[98:99]\ns_waitcnt lgkmcnt(0)\nv_writelane_b32 v254, s96, {i}\nv_writelane_b32 v255, s98, {i}"); a.lg = []
def endpgm(a):
    if STAMP:
        a("s_waitcnt vmcnt(0)"); stamp(a, 15)
        a(f"s_mov_b64 exec, 0xffff\ns_lshl_b32 s98, s2, 3\ns_add_u32 s98, s98, s{S_W}\ns_lshl_b32 s98, s98, 7\ns_add_u32 s98, s98, {ST}\nv_lshl_add_u32 v1, v0, 3, s98")
        a(f"global_store_dwordx2 v1, v[254:255], s[{P_WS}:{P_WS+1}]")
    a("s_endpgm")

_uid = [0]
def uid():
    _uid[0] += 1; return _uid[0]
def lds_arrive(a, cnt, va, vt):
    a(f"v_mov_b32 v{va}, {cnt}\nv_mov_b32 v{vt}, 1\ns_waitcnt lgkmcnt(0)\ns_mov_b64 exec, 1\nds_add_u32 v{va}, v{vt}\ns_mov_b64 exec, -1")
    a.lg = []
def lds_spin(a, cnt, target, va, vt, sleep=0, mask=None):
    u = uid()
    a(f"v_mov_b32 v{va}, {cnt}\ns_mov_b32 s95, 0x40000")
    a(f"L_spin{u}:\nds_read_b32 v{vt}, v{va}\ns_waitcnt lgkmcnt(0)\nv_readfirstlane_b32 s94, v{vt}\ns_nop 0")
    if mask: a(f"s_and_b32 s93, s94, {mask}\ns_cmp_ge_u32 s93, {target}")
    else: a(f"s_cmp_ge_u32 s94, {target}")
    a(f"s_cbranch_scc1 L_spun{u}")
    if sleep: a(f"s_sleep {sleep}")
    a(f"s_sub_u32 s95, s95, 1\ns_cbranch_scc0 L_spin{u}\nL_spun{u}:")
    a.lg = []
def poll(a, loads, checks, sleep=2):
    u = uid()
    a(f"s_mov_b32 s95, 0x8000\nL_poll{u}:")
    for x in loads: a(x)
    a("s_waitcnt vmcnt(0)")
    a(f"v_cmp_ne_u32 vcc, s{S_NON}, v{checks[0]}")
    for c in checks[1:]:
        a(f"v_cmp_ne_u32 s[92:93], s{S_NON}, v{c}\ns_nop 0\ns_or_b64 vcc, vcc, s[92:93]")
    a(f"s_nop 0\ns_cmp_eq_u64 vcc, 0\ns_cbranch_scc1 L_polled{u}\ns_sleep {sleep}\ns_sub_u32 s95, s95, 1\ns_cbranch_scc0 L_poll{u}\nL_polled{u}:")
    a.vm = []
def flag(a, soff, vt):
    a(f"v_mov_b32 v{vt}, 0\nv_mov_b32 v{vt+1}, s{S_NON}\ns_waitcnt vmcnt(0)\ns_mov_b64 exec, 1")
    a(f"buffer_store_dword v{vt+1}, v{vt}, s[{SF}:{SF+3}], {soff} offen{SC}\ns_mov_b64 exec, -1")
    a.vm = [None]

def half_sum(a, r, t):
    for st in ("quad_perm:[1,0,3,2]", "quad_perm:[2,3,0,1]", "row_half_mirror", "row_mirror"):
        a(f"s_nop 1\nv_add_f32_dpp v{r}, v{r}, v{r} {st} row_mask:0xf bank_mask:0xf")
    a(f"v_mov_b32 v{t}, v{r}\ns_nop 1\nv_permlane16_swap_b32 v{r}, v{t}\nv_add_f32 v{r}, v{r}, v{t}")

def w160_patterns(a, vt, outs):
    for i in range(5):
        a(f"v_add_u32 v{vt}, {64*i}, v0")
        a(f"v_mul_u32_u24 v{vt+1}, 205, v{vt}\nv_lshrrev_b32 v{vt+1}, 11, v{vt+1}")
        a(f"v_mul_u32_u24 v{vt+2}, 10, v{vt+1}\nv_sub_u32 v{vt+2}, v{vt}, v{vt+2}\nv_lshlrev_b32 v{vt+2}, 4, v{vt+2}")
        outs(i, vt + 1, vt + 2)
def tr160_addr(a, vd, vt):
    a(f"v_lshrrev_b32 v{vt}, 5, v0\nv_lshlrev_b32 v{vt}, 4, v{vt}")
    a(f"v_bfe_u32 v{vd}, v0, 2, 3\nv_add_u32 v{vt}, v{vt}, v{vd}")
    a(f"v_mul_u32_u24 v{vt}, 160, v{vt}\nv_and_b32 v{vd}, 3, v0\nv_lshl_add_u32 v{vd}, v{vd}, 3, v{vt}")
def xfrag_addr(a, vd, vt, base):
    a(f"v_and_b32 v{vt}, 15, v0\nv_lshrrev_b32 v{vt+1}, 4, v0\nv_xor_b32 v{vt+1}, v{vt+1}, v{vt}")
    a(f"v_lshrrev_b32 v{vt+2}, 2, v{vt}\nv_mul_u32_u24 v{vt+2}, 5120, v{vt+2}\nv_and_b32 v{vt}, 3, v{vt}\nv_lshl_add_u32 v{vt+2}, v{vt}, 8, v{vt+2}\nv_add_u32 v{vt+2}, {base}, v{vt+2}")
    for k in range(4):
        a(f"v_xor_b32 v{vt}, {4*k}, v{vt+1}\nv_lshl_add_u32 v{vd+k}, v{vt}, 4, v{vt+2}")
XF = 64
def unpack(a, dst, src, n):
    for j in range(n):
        a(f"v_lshlrev_b32 v{dst+2*j}, 16, v{src+j}\nv_and_b32 v{dst+2*j+1}, 0xffff0000, v{src+j}")
def rnd(a, r):
    a(f"v_cvt_pk_bf16_f32 v{r}, v{r}, v{r}\nv_lshlrev_b32 v{r}, 16, v{r}")

def role_rows(a):
    a("s_setprio 3")
    a(f"s_load_dword s{S_NON}, s[{SF}:{SF+1}], {GEN}")
    srd(a, 40, P_X, 0, 2048 * 1280)
    a(f"s_lshl_b32 s35, s{S_TB}, 6\ns_lshl_b32 s36, s{S_HB}, 3\ns_add_u32 s36, s36, s35\ns_lshl_b32 s38, s37, 1\ns_add_u32 s36, s36, s38\ns_mul_i32 s39, s36, 1280")
    a("v_and_b32 v52, 31, v0\nv_lshlrev_b32 v52, 3, v52\nv_lshrrev_b32 v53, 5, v0\nv_mul_u32_u24 v1, 1280, v53\nv_add_u32 v1, v1, v52")
    for j in range(5):
        a(f"buffer_load_dwordx2 {vr(2+2*j,2)}, v1, s[40:43], s39 offen offset:{256*j}")
    a(f"s_lshr_b32 s36, s{S_HB}, 1\ns_lshl_b32 s36, s36, 4\ns_add_u32 s64, s35, s36")
    a("s_lshl_b32 s38, s37, 2\nv_lshrrev_b32 v54, 4, v0\nv_add_u32 v54, s38, v54\nv_and_b32 v55, 15, v0\nv_xor_b32 v55, v55, v54\nv_mul_u32_u24 v54, 1280, v54\nv_lshl_add_u32 v54, v55, 4, v54")
    a(f"s_mul_i32 s36, s64, 1280\ns_mul_i32 s38, s37, 5120")
    for j in range(5):
        a(f"s_add_u32 m0, s38, {XA + 3*20480 + 768*j}\ns_nop 0")
        a(f"buffer_load_dwordx4 v54, s[40:43], s36 offen offset:{256*j} lds")
    a(f"s_and_b32 s36, s{S_HB}, 1\ns_cmp_eq_u32 s36, 0\ns_cselect_b32 s48, s{P_WK}, s{P_WV}\ns_cselect_b32 s49, s{P_WK+1}, s{P_WV+1}")
    a("s_mov_b32 s50, 25600\ns_mov_b32 s51, 0x20000\nv_lshlrev_b32 v55, 4, v0\ns_mul_i32 s36, s37, 6144")
    for h in range(2):
        a(f"s_add_u32 m0, s36, {WKV}\ns_nop 0")
        for i in range(3):
            a(f"buffer_load_dwordx4 v55, s[48:51], s36 offen offset:{1024*i} lds")
        if h == 0: a("s_add_u32 s36, s36, 3072")
    a(f"s_cmp_lg_u32 s37, 3\ns_cbranch_scc1 L_r1\nbuffer_load_dwordx4 v55, s[48:51], s36 offen offset:3072 lds\nL_r1:")
    srd(a, 44, P_GW, 0, 1280)
    a("s_waitcnt vmcnt(11)"); stamp(a, 1)
    X, T = 12, 32
    unpack(a, X, 2, 10)
    a(f"v_pk_add_f32 v[56:57], {vr(X,2)}, {vr(X+2,2)}\nv_pk_add_f32 v[58:59], {vr(X+4,2)}, {vr(X+6,2)}")
    for j in range(4, 10, 2):
        a(f"v_pk_add_f32 v[56:57], v[56:57], {vr(X+2*j,2)}\nv_pk_add_f32 v[58:59], v[58:59], {vr(X+2*j+2,2)}")
    a("v_pk_add_f32 v[56:57], v[56:57], v[58:59]\nv_add_f32 v56, v56, v57")
    half_sum(a, 56, 57)
    a(f"v_mul_f32 v56, {fbits(1.0/640)}, v56")
    for j in range(10):
        a(f"v_pk_add_f32 {vr(T+2*j,2)}, {vr(X+2*j,2)}, v[56:57] op_sel_hi:[1,0] neg_lo:[0,1] neg_hi:[0,1]")
    a(f"v_pk_mul_f32 v[58:59], {vr(T,2)}, {vr(T,2)}\nv_pk_mul_f32 v[60:61], {vr(T+2,2)}, {vr(T+2,2)}")
    for j in range(2, 10, 2):
        a(f"v_pk_fma_f32 v[58:59], {vr(T+2*j,2)}, {vr(T+2*j,2)}, v[58:59]\nv_pk_fma_f32 v[60:61], {vr(T+2*j+2,2)}, {vr(T+2*j+2,2)}, v[60:61]")
    a("v_pk_add_f32 v[58:59], v[58:59], v[60:61]\nv_add_f32 v58, v58, v59")
    rnd(a, 56)
    x = Asm(); half_sum(x, 58, 59)
    y = Asm()
    for j in range(10):
        y(f"v_pk_add_f32 {vr(T+2*j,2)}, {vr(X+2*j,2)}, v[56:57] op_sel_hi:[1,0] neg_lo:[0,1] neg_hi:[0,1]")
    for ln in x.l:
        if ln == "s_nop 1": a(y.l.pop(0)); a(y.l.pop(0))
        else: a(ln)
    a(f"v_mul_f32 v58, {fbits(1.0/640)}, v58"); rnd(a, 58)
    a(f"v_add_f32 v58, {fbits(1e-5)}, v58"); rnd(a, 58)
    a("v_sqrt_f32 v58, v58")
    for j in range(10):
        a(f"v_cvt_pk_bf16_f32 v{2+j}, v{T+2*j}, v{T+2*j+1}")
    rnd(a, 58)
    a("v_rcp_f32 v58, v58")
    unpack(a, T, 2, 10)
    for j in range(10):
        a(f"v_pk_mul_f32 {vr(T+2*j,2)}, {vr(T+2*j,2)}, v[58:59] op_sel_hi:[1,0]")
    for j in range(10):
        a(f"v_cvt_pk_bf16_f32 v{2+j}, v{T+2*j}, v{T+2*j+1}")
    a(f"s_mul_i32 s36, s37, 2688\ns_add_u32 s36, s36, {HROW}\nv_mul_u32_u24 v56, 1344, v53\nv_add3_u32 v56, v56, v52, s36")
    for j in range(5):
        a(f"ds_write_b64 v56, {vr(2+2*j,2)} offset:{256*j}")
    stamp(a, 2)
    a("s_waitcnt vmcnt(0)")
    lds_arrive(a, C_R, 56, 57)
    a(f"s_mul_i32 s{S_NON}, s{S_NON}, 1664525\ns_add_u32 s{S_NON}, s{S_NON}, 1013904223")
    GR = 168
    for j in range(5):
        a(f"buffer_load_dwordx2 {vr(GR+2*j,2)}, v52, s[44:47], 0 offen offset:{256*j}")
    a(f"v_mov_b32 v56, {C_NON}\nv_mov_b32 v57, s{S_NON}\nds_write_b32 v56, v57")
    a(f"s_cmp_lt_u32 s37, 2\ns_cbranch_scc1 L_kv")
    srd(a, 52, P_WS, HF, 64 * 40960)
    a(f"v_bfe_u32 v2, v0, 2, 2\nv_mul_u32_u24 v2, 1344, v2\nv_lshrrev_b32 v3, 4, v0\nv_lshl_add_u32 v2, v3, 5, v2\nv_and_b32 v4, 3, v0\nv_lshl_add_u32 v2, v4, 3, v2")
    a(f"s_sub_u32 s36, s37, 2\ns_mul_i32 s65, s36, 640\ns_add_u32 s65, s65, {HROW}\nv_add_u32 v2, s65, v2")
    a("v_and_b32 v4, 15, v0\nv_lshlrev_b32 v4, 4, v4\nv_lshl_add_u32 v4, v3, 10, v4")
    a(f"s_lshr_b32 s66, s64, 5\ns_mul_i32 s66, s66, 40960\ns_and_b32 s65, s{S_HB}, 3\ns_lshl_b32 s65, s65, 8\ns_add_u32 s66, s66, s65")
    a(f"s_mul_i32 s36, s36, 20480\ns_add_u32 s66, s66, s36")
    lds_spin(a, C_R, 4, 56, 57); stamp(a, 3)
    for u in range(5):
        a(f"ds_read_b64_tr_b16 {vr(64+4*u,2)}, v2 offset:{128*u}\nds_read_b64_tr_b16 {vr(66+4*u,2)}, v2 offset:{128*u + 4*1344}")
    for u in range(5):
        a(f"s_waitcnt lgkmcnt({8-2*u})")
        a(f"buffer_store_dwordx4 {vr(64+4*u,4)}, v4, s[52:55], s66 offen{SC}")
        if u < 4: a("s_add_u32 s66, s66, 4096")
    a("s_waitcnt vmcnt(5)\ns_branch L_gate")
    a("L_kv:")
    srd(a, 52, P_WS, KF, 64 * KT)
    a("v_lshrrev_b32 v3, 4, v0\nv_lshlrev_b32 v2, 3, v3\nv_bfe_u32 v4, v0, 2, 2\nv_add_u32 v2, v2, v4\nv_mul_u32_u24 v2, 40, v2")
    a(f"v_and_b32 v4, 3, v0\nv_lshlrev_b32 v4, 3, v4\nv_mov_b32 v5, 32\ns_cmp_eq_u32 s37, 1\ns_cselect_b64 vcc, -1, 0\nv_cndmask_b32 v4, v4, v5, vcc")
    a(f"v_add_u32 v2, v2, v4\nv_add_u32 v2, {WKV}, v2\nv_and_b32 v6, 15, v0")
    xfrag_addr(a, 60, 56, XA + 3 * 20480)
    a(f"s_lshr_b32 s65, s64, 5\ns_mul_i32 s65, s65, {KT}\ns_bfe_u32 s66, s64, 0x10004")
    lds_spin(a, C_R, 4, 56, 57); stamp(a, 3)
    WF, AC = 144, 32
    def kvchain(isv):
        def rd(ks):
            b = WF + 4 * (ks % 6)
            a(f"ds_read_b128 {vr(XF+4*ks,4)}, v{60+(ks&3)} offset:{1024*(ks>>2)}")
            a(f"ds_read_b64_tr_b16 {vr(b,2)}, v2 offset:{1280*ks}\nds_read_b64_tr_b16 {vr(b+2,2)}, v2 offset:{1280*ks+160}")
        for ks in range(4): rd(ks)
        for ks in range(20):
            if ks + 4 < 20: rd(ks + 4)
            a(f"s_waitcnt lgkmcnt({3*(min(19, ks+4) - ks)})")
            w = vr(WF + 4 * (ks % 6), 4); x = vr(XF + 4 * ks, 4)
            acc = AC + 4 * (ks & 1)
            a(f"v_mfma_f32_16x16x32_bf16 {vr(acc,4)}, {x if isv else w}, {w if isv else x}, {'0' if ks < 2 else vr(acc,4)}")
    def kvfin():
        a(f"v_pk_add_f32 {vr(AC,2)}, {vr(AC,2)}, {vr(AC+4,2)}\nv_pk_add_f32 {vr(AC+2,2)}, {vr(AC+2,2)}, {vr(AC+6,2)}")
        a(f"v_cvt_pk_bf16_f32 v8, v{AC}, v{AC+1}\nv_cvt_pk_bf16_f32 v9, v{AC+2}, v{AC+3}")
    a(f"s_and_b32 s36, s{S_HB}, 1\ns_cbranch_scc1 L_v")
    kvchain(False)
    a("s_lshl_b32 s66, s66, 4\nv_add_u32 v6, s66, v6")
    a("v_lshrrev_b32 v4, 1, v3\nv_lshlrev_b32 v4, 9, v4\nv_lshl_add_u32 v4, v6, 4, v4\nv_and_b32 v5, 1, v3\nv_lshl_add_u32 v4, v5, 3, v4\ns_nop 0")
    kvfin()
    a(f"s_cmp_eq_u32 s37, 0\ns_cbranch_scc1 L_kvst\nv_lshlrev_b32 v4, 3, v6\nv_add_u32 v4, {K_T}, v4\ns_mov_b64 exec, 0xffff\ns_branch L_kvst")
    a("L_v:")
    kvchain(True)
    a(f"s_mul_i32 s66, s66, 768\ns_add_u32 s65, s65, s66\ns_add_u32 s65, s65, {V_A}\ns_lshl_b32 s36, s37, 9\ns_add_u32 s65, s65, s36\ns_sub_u32 s36, 8, s37")
    a("v_lshrrev_b32 v4, 1, v3\nv_lshlrev_b32 v4, s36, v4\nv_lshl_add_u32 v4, v6, 4, v4\nv_and_b32 v5, 1, v3\nv_lshl_add_u32 v4, v5, 3, v4")
    kvfin()
    a("s_cmp_eq_u32 s37, 0\ns_cbranch_scc1 L_kvst")
    a("s_mov_b32 exec_lo, 0x00100010\ns_mov_b32 exec_hi, 0x00100010\nv_mov_b32 v8, 0x3f803f80\nv_mov_b32 v9, 0x3f803f80")
    a("s_mov_b32 exec_lo, 0x001f001f\ns_mov_b32 exec_hi, 0x001f001f")
    a(f"L_kvst:\nbuffer_store_dwordx2 v[8:9], v4, s[52:55], s65 offen{SC}\ns_mov_b64 exec, -1\ns_waitcnt vmcnt(1)")
    a("L_gate:"); stamp(a, 4)
    unpack(a, T, GR, 10)
    for j in range(10): a(f"v_pk_mul_f32 {vr(T+2*j,2)}, {vr(T+2*j,2)}, {vr(X+2*j,2)}")
    for j in range(10): a(f"v_cvt_pk_bf16_f32 v{GR+j}, v{T+2*j}, v{T+2*j+1}")
    unpack(a, T, GR, 10)
    for j in range(2, 10, 2):
        a(f"v_pk_add_f32 {vr(T,2)}, {vr(T,2)}, {vr(T+2*j,2)}\nv_pk_add_f32 {vr(T+2,2)}, {vr(T+2,2)}, {vr(T+2*j+2,2)}")
    a(f"v_pk_add_f32 v[56:57], {vr(T,2)}, {vr(T+2,2)}\nv_add_f32 v56, v56, v57")
    half_sum(a, 56, 57)
    rnd(a, 56)
    a(f"v_mul_f32 v56, {fbits(-math.log2(math.e))}, v56\nv_exp_f32 v56, v56\ns_nop 0\nv_add_f32 v56, 1.0, v56\nv_rcp_f32 v56, v56\ns_nop 0")
    rnd(a, 56)
    a(f"v_sub_f32 v57, 1.0, v56\nv_cvt_pk_bf16_f32 v56, v56, v57\nv_mov_b32 v57, s{S_NON}\nv_lshlrev_b32 v58, 3, v53")
    a(f"s_lshl_b32 s36, s{S_TB}, 3\ns_add_u32 s36, s36, s{S_HB}\ns_lshl_b32 s36, s36, 6\ns_lshl_b32 s38, s37, 14\ns_add_u32 s36, s36, s38")
    a(f"s_waitcnt vmcnt(0)\ns_mov_b32 exec_lo, 1\ns_mov_b32 exec_hi, 1\nbuffer_store_dwordx2 v[56:57], v58, s[{SF}:{SF+3}], s36 offen offset:{F1}{SC}\ns_mov_b64 exec, -1")
    stamp(a, 5)
    a("s_setprio 0")

def role_q(a):
    srd(a, 40, P_X, 0, 2048 * 1280)
    srd(a, 48, P_WQ, 0, 640 * 1280)
    a(f"s_mul_i32 s65, s{S_HB}, 160")
    def outs(i, vrho, vc):
        a(f"v_lshrrev_b32 v33, 1, v{vrho}\nv_xor_b32 v33, v33, v{vrho}\nv_and_b32 v33, 4, v33\nv_mul_u32_u24 v33, 3, v33\nv_xor_b32 v33, v33, v{vrho}")
        a(f"v_mul_u32_u24 v33, 1280, v33\nv_add3_u32 v{25+i}, v33, v{vc}, s65")
    w160_patterns(a, 30, outs)
    a(f"s_lshr_b32 s36, s{S_HB}, 1\ns_xor_b32 s37, s36, s{S_W}\ns_xor_b32 s37, s37, 3")
    a(f"s_mul_i32 s38, s37, 20480\ns_add_u32 s38, s38, {XA}")
    xfrag_addr(a, 34, 30, "s38")
    def wq_step(sglob, slds, off):
        for i in range(5):
            a(f"s_add_u32 m0, {slds}, {off + i*1024}\ns_nop 0")
            a(f"buffer_load_dwordx4 v{25+i}, s[48:51], {sglob} offen lds")
    def chunk(sglob, slds):
        for k in range(4):
            wq_step(sglob, slds, k * 5120)
            if k < 3: a(f"s_add_u32 {sglob}, {sglob}, 40960")
    def chunk1():
        a(f"s_add_u32 s36, s{S_W}, 4\ns_mul_i32 s66, s36, 40960\ns_mul_i32 s67, s36, 5120")
        wq_step("s66", "s67", WQ)
    def frags():
        for ks in range(20):
            a(f"ds_read_b128 {vr(XF+4*ks,4)}, v{34+(ks&3)} offset:{1024*(ks>>2)}")
        a("s_waitcnt lgkmcnt(0)")
    a("s_cmp_eq_u32 s37, 3\ns_cbranch_scc1 L_qcrit")
    a("v_lshrrev_b32 v30, 4, v0\nv_and_b32 v31, 15, v0\nv_xor_b32 v31, v31, v30\nv_mul_u32_u24 v30, 1280, v30")
    for i in range(4):
        a(f"v_xor_b32 v32, {4*i}, v31\nv_lshl_add_u32 v{38+i}, v32, 4, v30")
    a(f"s_lshl_b32 s35, s{S_TB}, 6\ns_lshl_b32 s36, s{S_W}, 4\ns_add_u32 s36, s35, s36\ns_mul_i32 s66, s36, 1280")
    for i in range(4):
        for j in range(5):
            a(f"s_add_u32 m0, s38, {5120*i + 768*j}\ns_nop 0")
            a(f"buffer_load_dwordx4 v{38+i}, s[40:43], s66 offen offset:{256*j} lds")
        if i < 3: a("s_add_u32 s66, s66, 5120")
    chunk1()
    a("s_waitcnt vmcnt(5)"); stamp(a, 1)
    frags()
    a(f"s_add_u32 s36, s37, 2\ns_mul_i32 s66, s36, {4*40960}")
    chunk("s66", "s38")
    a("s_waitcnt vmcnt(20)\ns_branch L_qgo")
    a("L_qcrit:")
    a(f"s_mov_b32 s66, 0\ns_mov_b32 s67, {WQ}")
    chunk("s66", "s67")
    chunk1()
    lds_spin(a, C_R, 4, 30, 31, sleep=1); stamp(a, 1)
    frags()
    a("s_waitcnt vmcnt(0)")
    a("L_qgo:")
    tr160_addr(a, 2, 3)
    a("v_add_u32 v3, 51200, v2")
    WB, ACC = 144, 184
    def rdq(ks):
        for b in range(5):
            r = WB + 20 * (ks & 1) + 4 * b
            ad, off = (2, ks * 5120) if ks < 10 else (3, (ks - 10) * 5120)
            a.ds(f"ds_read_b64_tr_b16 {vr(r,2)}, v{ad} offset:{off + 32*b}", ("w", ks, b))
            a.ds(f"ds_read_b64_tr_b16 {vr(r+2,2)}, v{ad} offset:{off + 32*b + 1280}", ("w", ks, b))
    a(f"s_lshr_b32 s36, s{S_W}, 1\ns_mul_i32 s64, s36, 5120\ns_add_u32 s64, s64, {QST}")
    a(f"s_and_b32 s36, s{S_W}, 1\ns_lshl_b32 s36, s36, 4\nv_and_b32 v4, 15, v0\nv_add_u32 v4, s36, v4\nv_lshrrev_b32 v5, 4, v0")
    for b in range(5):
        a(f"v_add_u32 v6, {4*b}, v5\nv_mul_u32_u24 v7, 52, v6\nv_lshrrev_b32 v7, 8, v7\nv_mul_u32_u24 v8, 5, v7\nv_sub_u32 v8, v6, v8")
        a("v_mul_u32_u24 v7, 1280, v7\nv_lshrrev_b32 v9, 1, v8\nv_lshl_add_u32 v7, v9, 9, v7\nv_and_b32 v9, 1, v8\nv_lshl_add_u32 v7, v9, 3, v7")
        a(f"v_lshrrev_b32 v9, 2, v8\nv_sub_u32 v9, 4, v9\nv_lshl_add_u32 v{10+b}, v4, v9, v7\nv_add_u32 v{10+b}, s64, v{10+b}")
    stamp(a, 2)
    for lo, hi in ((0, 8), (8, 20)):
        if lo: a("s_waitcnt vmcnt(0)")
        a("s_barrier"); stamp(a, 3 if lo == 0 else 4)
        rdq(lo)
        for ks in range(lo, hi):
            a.wait(lg="all")
            if ks + 1 < hi: rdq(ks + 1)
            for b in range(5):
                a(f"v_mfma_f32_16x16x32_bf16 {vr(ACC+4*b,4)}, {vr(WB+20*(ks&1)+4*b,4)}, {vr(XF+4*ks,4)}, {'0' if ks == 0 else vr(ACC+4*b,4)}")
    a(f"v_mov_b32 v4, {C_NON}\nds_read_b32 v5, v4\ns_mov_b32 s66, {fbits(QSCALE)}\ns_mov_b32 s67, s66")
    for b in range(5):
        r = ACC + 4 * b
        a(f"v_pk_mul_f32 {vr(r,2)}, {vr(r,2)}, s[66:67]\nv_pk_mul_f32 {vr(r+2,2)}, {vr(r+2,2)}, s[66:67]")
        a(f"v_cvt_pk_bf16_f32 v{r}, v{r}, v{r+1}\nv_cvt_pk_bf16_f32 v{r+1}, v{r+2}, v{r+3}")
        a(f"ds_write_b64 v{10+b}, {vr(r,2)}")
    a(f"s_waitcnt lgkmcnt(0)\nv_readfirstlane_b32 s{S_NON}, v5\ns_barrier"); stamp(a, 5)

G_DMA, G_TR, G_ACT, G_ACC, G_AR, G_W = 1, 5, 9, 16, 96, 176
D = 4
def gemm_addr(a):
    a(f"v_lshrrev_b32 v11, 2, v0")
    a(f"v_lshlrev_b32 v12, 7, v11\nv_and_b32 v13, 3, v0\nv_lshl_add_u32 v12, v13, 3, v12\nv_add_u32 v12, s38, v12")
    a(f"v_bfe_u32 v13, v0, 3, 2")
    for cb in range(4):
        a(f"v_xor_b32 v14, {cb}, v13\nv_lshl_add_u32 v{G_TR+cb}, v14, 5, v12")
    a(f"v_lshlrev_b32 v{G_ACT}, 4, v0\nv_add_u32 v{G_ACT+1}, 4096, v{G_ACT}")
def gemm_dma_addr(a, stride, natural):
    a(f"v_bfe_u32 v12, v0, 4, 2\nv_lshlrev_b32 v12, 1, v12\nv_and_b32 v13, 7, v0\nv_xor_b32 v12, v12, v13\nv_lshrrev_b32 v11, 3, v0")
    if natural:
        a("v_and_b32 v13, 4, v11\nv_add_u32 v11, v11, v13")
    a(f"v_mul_u32_u24 v11, {stride}, v11\nv_lshl_add_u32 v{G_DMA}, v12, 4, v11")
    for i in range(1, 4):
        row = (16 * (i & 1) + 4 * (i >> 1)) if natural else 8 * i
        a(f"v_add_u32 v{G_DMA+i}, {row*stride - 1024*i}, v{G_DMA}")

class Gemm:
    def __init__(self, a, name, nsteps, wsrd, asrd, s_w, s_a, wstep, astep, w_is_a):
        self.__dict__.update(locals())
    def dma(self, s):
        a = self.a
        a(f"s_add_u32 m0, s38, {(s % D)*4096}")
        if s > 0: a(f"s_add_u32 s{self.s_w}, s{self.s_w}, {self.wstep}")
        else: a("s_nop 0")
        for i in range(4):
            a.vmem(f"buffer_load_dwordx4 v{G_DMA+i}, {sr(self.wsrd,4)}, s{self.s_w} offen offset:{1024*i} lds", (self.name, "w", s))
    def act(self, s, b):
        a = self.a
        if b == 0 and s > 0: a(f"s_add_u32 s{self.s_a}, s{self.s_a}, {self.astep}")
        r = G_AR + 20 * (s % D) + 4 * b
        ad, off = (G_ACT, 1024 * b) if b < 4 else (G_ACT + 1, 0)
        a.vmem(f"buffer_load_dwordx4 {vr(r,4)}, v{ad}, {sr(self.asrd,4)}, s{self.s_a} offen offset:{off}{SC}", (self.name, "a", s))
    def rd(self, s, cb):
        a = self.a
        r = G_W + 16 * (s & 1) + 4 * cb
        a.ds(f"ds_read_b64_tr_b16 {vr(r,2)}, v{G_TR+cb} offset:{(s % D)*4096}", (self.name, s))
        a.ds(f"ds_read_b64_tr_b16 {vr(r+2,2)}, v{G_TR+cb} offset:{(s % D)*4096 + 2048}", (self.name, s))
    def pro_w(self):
        for s in range(D): self.dma(s)
    def pro_a(self):
        for s in range(D):
            for b in range(5): self.act(s, b)
    def run(self, after_last_read=None):
        a = self.a; n = self.nsteps
        a.wait(vm=(self.name, "w", 0))
        for cb in range(4): self.rd(0, cb)
        for s in range(n):
            need = [(self.name, "a", s)] + ([(self.name, "w", s + 1)] if s + 1 < n else [])
            a.wait(vm=need, lg=(self.name, s))
            if s + D < n: self.dma(s + D)
            if s == n - 1 and after_last_read: after_last_read()
            for b in range(5):
                for cb in range(4):
                    acc = vr(G_ACC + 4 * (4 * b + cb), 4)
                    w = vr(G_W + 16 * (s & 1) + 4 * cb, 4); x = vr(G_AR + 20 * (s % D) + 4 * b, 4)
                    a(f"v_mfma_f32_16x16x32_bf16 {acc}, {w if self.w_is_a else x}, {x if self.w_is_a else w}, {'0' if s == 0 else acc}")
                    if cb == 1 and b < 4 and s + 1 < n: self.rd(s + 1, b)
                if s + D < n: self.act(s + D, b)

def gelu8(a, r, t):
    for j in range(0, 8, 2): a(f"v_pk_mul_f32 {vr(t+j,2)}, {vr(r+j,2)}, {vr(r+j,2)}")
    for j in range(0, 8, 2): a(f"v_pk_fma_f32 {vr(t+j,2)}, {vr(t+j,2)}, s[70:71], v[14:15]")
    for j in range(0, 8, 2): a(f"v_pk_mul_f32 {vr(t+j,2)}, {vr(t+j,2)}, {vr(r+j,2)}")
    for j in range(8): a(f"v_exp_f32 v{t+j}, v{t+j}")
    for j in range(0, 8, 2): a(f"v_pk_add_f32 {vr(t+j,2)}, {vr(t+j,2)}, 1.0 op_sel_hi:[1,0]")
    for j in range(8): a(f"v_rcp_f32 v{t+j}, v{t+j}")
    for j in range(0, 8, 2): a(f"v_pk_mul_f32 {vr(r+j,2)}, {vr(r+j,2)}, {vr(t+j,2)}")

WM, WT, WA = 228, 233, 238
def role_gemm(a):
    a("s_lshl_b32 s38, s37, 14")
    gemm_addr(a)
    a(f"s_and_b32 s35, s2, 7\ns_lshr_b32 s36, s2, 3")
    a("s_and_b32 s64, s35, 1\ns_lshl_b32 s64, s64, 2\ns_and_b32 s65, s36, 3\ns_add_u32 s64, s64, s65")
    a("s_lshr_b32 s65, s35, 1\ns_mul_i32 s65, s65, 7\ns_lshr_b32 s36, s36, 2\ns_add_u32 s65, s65, s36")
    a("s_cmp_ge_u32 s36, 7\ns_cselect_b32 s65, 27, s65")
    srd(a, 40, P_W1, 0, 2048 * 3456)
    srd(a, 44, P_WS, HF, 64 * 40960)
    srd(a, 48, P_B1, 0, 3456)
    srd(a, 56, P_W2, 0, 1728 * 4096)
    srd(a, 52, P_WS, GF, 54 * 40960)
    gemm_dma_addr(a, 3456, True)
    a(f"s_mul_i32 s66, s37, {32*3456}\ns_lshl_b32 s36, s65, 7\ns_add_u32 s66, s66, s36")
    a(f"s_mul_i32 s67, s37, 40960\ns_mul_i32 s36, s64, 5120\ns_add_u32 s67, s67, s36")
    a(f"s_lshl_b32 s76, s37, 17\ns_lshl_b32 s36, s{S_TB}, 7\ns_add_u32 s76, s76, s36")
    a(f"s_mul_i32 s77, s37, 40960\ns_mul_i32 s36, s{S_HB}, 5120\ns_add_u32 s77, s77, s36")
    a(f"s_mul_i32 s70, s{S_HB}, 160")
    def outs(i, vrho, vc):
        a(f"v_lshrrev_b32 v14, 4, v{vrho}\nv_lshl_add_u32 v14, v14, 2, v{vrho}\nv_mul_u32_u24 v14, 1280, v14\nv_add3_u32 v{WM+i}, v14, v{vc}, s70")
        a(f"v_lshrrev_b32 v14, 4, v{vrho}\nv_bfe_u32 v15, v{vrho}, 2, 1\nv_lshl_add_u32 v14, v14, 1, v15\nv_bfe_u32 v15, v{vrho}, 3, 1\nv_lshl_add_u32 v14, v14, 1, v15")
        a(f"v_mul_u32_u24 v14, 20, v14\nv_and_b32 v15, 3, v{vrho}\nv_add3_u32 v14, v14, v15, 16\nv_mul_u32_u24 v14, 1280, v14\nv_add3_u32 v{WT+i}, v14, v{vc}, s70")
    w160_patterns(a, 11, outs)
    tr160_addr(a, WA, 11)
    a(f"v_add_u32 v{WA}, s38, v{WA}")
    a("v_lshrrev_b32 v11, 2, v0\nv_lshlrev_b32 v11, 4, v11\nv_and_b32 v12, 3, v0\nv_add_u32 v11, v11, v12\nv_lshlrev_b32 v240, 6, v11")
    a(f"s_lshr_b32 s36, s64, 2\ns_add_u32 s36, s36, 2\ns_lshl_b32 s36, s36, 14\ns_lshl_b32 s68, s37, 8\ns_add_u32 s78, s36, s68")
    a("s_and_b32 s36, s37, 1\ns_lshl_b32 s36, s36, 6\ns_lshl_b32 s68, s65, 7\ns_add_u32 s68, s68, s36\nv_lshrrev_b32 v11, 4, v0\nv_lshlrev_b32 v11, 3, v11")
    a("s_barrier\ns_barrier\ns_barrier"); stamp(a, 6)
    g1 = Gemm(a, "g1", 16, 40, 44, 66, 67, 4 * 32 * 3456, 4 * 40960, True)
    g2 = Gemm(a, "g2", 14, 56, 52, 76, 77, 4 * 32 * 4096, 4 * 40960, False)
    a("s_cmp_ge_u32 s65, 27\ns_cbranch_scc1 L_nog1")
    g1.pro_w()
    a.vmem("buffer_load_dwordx2 v[208:209], v11, s[48:51], s68 offen", "b1")
    a.vmem("buffer_load_dwordx2 v[210:211], v11, s[48:51], s68 offen offset:32", "b1")
    poll(a, [f"buffer_load_dword v12, v240, s[{SF}:{SF+3}], s78 offen offset:{F1+4}{SC}"], [12]); stamp(a, 7)
    g1.pro_a()
    def pre2():
        gemm_dma_addr(a, 4096, False)
        g2.pro_w()
    g1.run(after_last_read=pre2)
    a("s_setprio 2"); stamp(a, 8)
    a(f"s_mul_i32 s36, s37, 20480\ns_add_u32 s36, s36, {SCR}\nv_add_u32 v11, s36, v{G_ACT}")
    unpack(a, 212, 208, 4)
    for blk in range(20):
        a.ds(f"ds_write_b128 v11, {vr(G_ACC+4*blk,4)} offset:{1024*blk}")
    lds_arrive(a, C_G1A, 12, 13)
    k = 2.0 * math.sqrt(2.0 / math.pi) * math.log2(math.e)
    a(f"s_mov_b32 s70, {fbits(-k*0.044715)}\ns_mov_b32 s71, s70\nv_mov_b32 v14, {fbits(-k)}\nv_mov_b32 v15, v14")
    a(f"s_lshl_b32 s36, s37, 11\ns_add_u32 s36, s36, {SCR}\nv_add_u32 v11, s36, v{G_ACT}\nv_add_u32 v220, 40960, v11")
    a("s_lshl_b32 s69, s65, 1\ns_and_b32 s36, s37, 1\ns_add_u32 s69, s69, s36\ns_mul_i32 s69, s69, 40960")
    a("s_mul_i32 s36, s64, 5120\ns_add_u32 s69, s69, s36\ns_lshr_b32 s36, s37, 1\ns_lshl_b32 s36, s36, 10\ns_add_u32 s69, s69, s36")
    a(f"s_mul_i32 s79, s64, 27\ns_add_u32 s79, s79, s65\ns_lshl_b32 s79, s79, 2\ns_add_u32 s79, s79, s37\ns_lshl_b32 s79, s79, 6\ns_add_u32 s79, s79, {F2}")
    lds_spin(a, C_G1A, 4, 12, 13, sleep=1)
    R = 16
    def rdu(r):
        for src in range(4):
            for e in range(2):
                a.ds(f"ds_read_b128 {vr(R+32*r+8*src+4*e,4)}, v{11 if src < 2 else 220} offset:{(src&1)*20480 + 8192*r + 1024*e}", ("u", r))
    def fin(r):
        b = R + 32 * r
        for j in range(0, 8, 2):
            a(f"v_pk_add_f32 {vr(b+j,2)}, {vr(b+j,2)}, {vr(b+8+j,2)}\nv_pk_add_f32 {vr(b+16+j,2)}, {vr(b+16+j,2)}, {vr(b+24+j,2)}")
        for j in range(0, 8, 2): a(f"v_pk_add_f32 {vr(b+j,2)}, {vr(b+j,2)}, {vr(212+j,2)}")
        for j in range(0, 8, 2): a(f"v_pk_add_f32 {vr(b+j,2)}, {vr(b+j,2)}, {vr(b+16+j,2)}")
        gelu8(a, b, b + 8)
        for j in range(4): a(f"v_cvt_pk_bf16_f32 v{b+j}, v{b+2*j}, v{b+2*j+1}")
        a(f"buffer_store_dwordx4 {vr(b,4)}, v{G_ACT + (r>>1)}, s[52:55], s69 offen offset:{2048*(r&1)}{SC}")
    rdu(0); a.wait(lg="all"); rdu(1)
    fin(0)
    a.wait(lg="all")
    a(f"s_cmp_ge_u32 s37, 2\ns_cbranch_scc1 L_g1two")
    rdu(2); a.wait(lg="all"); fin(2)
    a("L_g1two:")
    lds_arrive(a, C_G1B, 12, 13)
    fin(1)
    flag(a, "s79", 12)
    a("s_branch L_g1done\nL_nog1:")
    lds_arrive(a, C_G1B, 12, 13)
    pre2()
    a("L_g1done:"); stamp(a, 9)
    srd(a, 48, P_B2, 0, 4096)
    srd(a, 40, P_WO, 0, 640 * 1280)
    a(f"s_mul_i32 s36, s{S_TB}, 81920\ns_add_u32 s36, s36, {OF}")
    srd(a, 60, P_WS, "s36", 81920)
    OM, B2 = 208, 248
    a("v_bfe_u32 v11, v0, 1, 2\nv_lshlrev_b32 v11, 14, v11\nv_bfe_u32 v12, v0, 3, 1\nv_lshl_add_u32 v11, v12, 6, v11\nv_and_b32 v12, 1, v0\nv_lshl_add_u32 v241, v12, 3, v11")
    a(f"v_and_b32 v11, 15, v0\nv_lshlrev_b32 v11, 1, v11\ns_lshl_b32 s68, s{S_TB}, 9\ns_lshl_b32 s69, s{S_TB}, 7")
    for cb in range(4):
        a(f"buffer_load_ushort v{B2+cb}, v11, s[48:51], s69 offen offset:{32*cb}")
    a("s_lshr_b32 s36, s37, 1\nv_lshrrev_b32 v11, 1, v0\nv_lshl_add_u32 v11, v11, 1, s36\ns_sub_u32 s36, 26, s36\nv_min_u32 v11, s36, v11")
    a("v_and_b32 v12, 1, v0\nv_lshlrev_b32 v12, 1, v12\nv_lshl_add_u32 v11, v11, 2, v12\nv_lshlrev_b32 v240, 6, v11")
    a(f"s_mul_i32 s78, s{S_HB}, {27*256}\ns_and_b32 s36, s37, 1\ns_lshl_b32 s36, s36, 6\ns_add_u32 s78, s78, s36\ns_add_u32 s78, s78, {F2}")
    poll(a, [f"buffer_load_dwordx2 {vr(OM+2*cb,2)}, v241, s[{SF}:{SF+3}], s68 offen offset:{F1+128*cb}{SC}" for cb in range(4)], [OM + 2 * cb + 1 for cb in range(4)])
    for cb in range(4):
        a(f"v_and_b32 v{OM+2*cb}, 0xffff0000, v{OM+2*cb}\nv_lshlrev_b32 v{B2+cb}, 16, v{B2+cb}\nv_mul_f32 v{OM+2*cb+1}, v{B2+cb}, v{OM+2*cb}")
    a("s_cmp_eq_u32 s37, 0\ns_cbranch_scc1 L_keepb")
    for cb in range(4): a(f"v_mov_b32 v{OM+2*cb+1}, 0")
    a("L_keepb:")
    poll(a, [f"buffer_load_dword v12, v240, s[{SF}:{SF+3}], s78 offen{SC}"], [12]); stamp(a, 10)
    g2.pro_a()
    a("s_setprio 0")
    a(f"s_mul_i32 s71, s37, {160*1280}")
    def wo_dma(i):
        if i < 4: a(f"s_add_u32 s70, s71, {40*1280*i}")
        for p in range(5):
            a(f"s_add_u32 m0, s38, {(i % 3)*5120 + 1024*p}\ns_nop 0")
            a.vmem(f"buffer_load_dwordx4 v{(WM if i < 4 else WT)+p}, s[40:43], {'s70' if i < 4 else 's71'} offen lds", ("wo", i))
    g2.run(after_last_read=lambda: [wo_dma(i) for i in range(3)])
    a("s_setprio 2"); stamp(a, 11)
    a(f"s_lshl_b32 s36, s37, 3\nv_add_u32 v11, s36, v0\ns_lshl_b32 s36, s{S_HB}, 2\nv_and_b32 v12, 3, v0\nv_add_u32 v12, s36, v12\nv_cmp_gt_u32 vcc, 8, v0")
    a(f"s_lshl_b32 s78, s{S_TB}, 11\ns_add_u32 s78, s78, {F3}\nv_cndmask_b32 v11, v12, v11, vcc\nv_lshlrev_b32 v240, 6, v11")
    for b in range(5):
        for cb in range(4):
            r = G_ACC + 4 * (4 * b + cb)
            for h in (0, 2):
                a(f"v_pk_fma_f32 {vr(r+h,2)}, {vr(r+h,2)}, {vr(OM+2*cb,2)}, {vr(OM+2*cb,2)} op_sel:[0,0,1] op_sel_hi:[1,0,1]")
    WOF = [176, 196, 216, 176, 196]
    def wo_rd(i):
        for b in range(5):
            r = WOF[i] + 4 * b
            a.ds(f"ds_read_b64_tr_b16 {vr(r,2)}, v{WA} offset:{(i % 3)*5120 + 32*b}", ("wo", i))
            a.ds(f"ds_read_b64_tr_b16 {vr(r+2,2)}, v{WA} offset:{(i % 3)*5120 + 32*b + 1280}", ("wo", i))
    for i in range(3):
        a.wait(vm=("wo", i)); wo_rd(i); a.wait(lg="all")
        if i < 2: wo_dma(3 + i)
    a(f"v_and_b32 v11, 15, v0\nv_mul_u32_u24 v11, 11, v11\nv_lshrrev_b32 v12, 5, v0\nv_add_u32 v11, v11, v12\nv_lshrrev_b32 v12, 4, v0\nv_lshlrev_b32 v12, 8, v12")
    a(f"s_mul_i32 s36, s37, 20480\ns_add_u32 s36, s36, {SCR}\nv_add_u32 v12, s36, v12")
    for b in range(5):
        a(f"v_add_u32 v13, {2*b}, v11\nv_and_b32 v13, 15, v13\nv_lshl_add_u32 v{G_DMA+b}, v13, 4, v12")
    final_addr(a)
    a("s_mul_i32 s70, s37, 20480"); stamp(a, 12)
    poll(a, [f"buffer_load_dword v12, v240, s[{SF}:{SF+3}], s78 offen{SC}"], [12], sleep=1); stamp(a, 13)
    for i in range(5):
        if i: a("s_add_u32 s70, s70, 4096")
        for cb in range(4):
            a.vmem(f"buffer_load_dwordx4 {vr(G_AR+16*i+4*cb,4)}, v{G_ACT}, s[60:63], s70 offen offset:{1024*cb}{SC}", ("o", i))
    for i in range(5):
        a.wait(vm=("o", i), lg=("wo", i))
        for b in range(5):
            for cb in range(4):
                acc = vr(G_ACC + 4 * (4 * b + cb), 4)
                a(f"v_mfma_f32_16x16x32_bf16 {acc}, {vr(WOF[i]+4*b,4)}, {vr(G_AR+16*i+4*cb,4)}, {acc}")
                if i == 4 and b >= 2:
                    blk = 4 * (b - 2) + cb
                    a.ds(f"ds_write_b128 v{G_DMA+b-2}, {vr(G_ACC+4*blk,4)} offset:{1024*blk}")
        if i < 2: wo_rd(3 + i)
    a("s_nop 0")
    for blk in range(12, 20):
        if blk == 16: a("s_nop 0")
        a.ds(f"ds_write_b128 v{G_DMA+(blk>>2)}, {vr(G_ACC+4*blk,4)} offset:{1024*blk}")
    stamp(a, 14)

FA = 242
def final_addr(a):
    for r in range(2):
        a(f"s_add_u32 s36, s{S_W}, {r*8}\ns_lshl_b32 s36, s36, 6\nv_add_u32 v12, s36, v0")
        a("v_mul_u32_u24 v13, 6554, v12\nv_lshrrev_b32 v13, 16, v13\nv_mul_u32_u24 v14, 10, v13\nv_sub_u32 v14, v12, v14")
        a(f"v_mul_u32_u24 v{FA+3*r}, 1280, v13\nv_lshl_add_u32 v{FA+3*r}, v14, 4, v{FA+3*r}")
        a("v_and_b32 v15, 15, v13\nv_mul_u32_u24 v15, 11, v15\nv_add_u32 v15, v15, v14\nv_and_b32 v15, 15, v15\nv_lshlrev_b32 v15, 4, v15")
        a("v_lshrrev_b32 v13, 4, v13\nv_lshl_add_u32 v15, v13, 10, v15\nv_lshrrev_b32 v13, 1, v14\nv_lshl_add_u32 v15, v13, 12, v15\nv_and_b32 v13, 1, v14\nv_lshl_add_u32 v15, v13, 9, v15")
        a(f"v_add_u32 v{FA+1+3*r}, {SCR}, v15\nv_add_u32 v{FA+2+3*r}, {SCR+40960}, v15")
def final(a):
    srd(a, 40, P_OUT, 0, 2048 * 1280)
    a(f"s_mul_i32 s64, s{S_TB}, {64*1280}\ns_mul_i32 s36, s{S_HB}, 160\ns_add_u32 s64, s64, s36")
    a("s_waitcnt lgkmcnt(0)\ns_barrier"); a.lg = []
    for r in range(2):
        if r == 1: a(f"s_cmp_ge_u32 s{S_W}, 2\ns_cbranch_scc1 L_fin")
        b = 32 + 32 * r
        for src in range(4):
            for e in range(2):
                a.ds(f"ds_read_b128 {vr(b+8*src+4*e,4)}, v{FA+1+3*r+(src>>1)} offset:{(src&1)*20480 + 256*e}")
        a.wait(lg="all")
        for j in range(0, 8, 2):
            a(f"v_pk_add_f32 {vr(b+j,2)}, {vr(b+j,2)}, {vr(b+8+j,2)}\nv_pk_add_f32 {vr(b+16+j,2)}, {vr(b+16+j,2)}, {vr(b+24+j,2)}")
        for j in range(0, 8, 2): a(f"v_pk_add_f32 {vr(b+j,2)}, {vr(b+j,2)}, {vr(b+16+j,2)}")
        for j in range(4): a(f"v_cvt_pk_bf16_f32 v{b+j}, v{b+2*j}, v{b+2*j+1}")
        a(f"buffer_store_dwordx4 {vr(b,4)}, v{FA+3*r}, s[40:43], s64 offen")
    a(f"s_or_b32 s36, s2, s{S_W}\ns_cbranch_scc1 L_fin")
    a(f"v_mov_b32 v1, {GEN}\nv_mov_b32 v2, s{S_NON}\ns_mov_b64 exec, 1\nbuffer_store_dword v2, v1, s[{SF}:{SF+3}], 0 offen\ns_mov_b64 exec, -1")

A_IDX, A_K0, A_KT, A_V, A_G = 1, 2, 3, 4, 248
A_Q, A_S, A_KV, A_O, NBUF = 8, 56, 88, 144, 4
GAPS = tuple(int(c) for c in E('GAPS', '22363'))
def kv_load(a, buf, soff):
    b = A_KV + 14 * buf
    a(f"buffer_load_dwordx4 {vr(b,4)}, v{A_K0}, s[40:43], {soff} offen{SC}")
    a(f"buffer_load_dwordx2 {vr(b+4,2)}, v{A_KT}, s[40:43], {soff} offen{SC}")
    a(f"buffer_load_dwordx4 {vr(b+6,4)}, v{A_V}, s[40:43], {soff} offen offset:{V_A}{SC}")
    a(f"buffer_load_dwordx4 {vr(b+10,4)}, v{A_V}, s[40:43], {soff} offen offset:{V_B}{SC}")
def qk(buf, t, s):
    b = A_KV + 14 * buf
    return (f"v_mfma_f32_32x32x16_bf16 {vr(s,16)}, {vr(b,4)}, {vr(A_Q+6*t,4)}, 0",
            f"v_mfma_f32_32x32x8_bf16 {vr(s,16)}, {vr(b+4,2)}, {vr(A_Q+6*t+4,2)}, {vr(s,16)}")
def pv(buf, t, s, e):
    b = A_KV + 14 * buf
    return f"v_smfmac_f32_32x32x32_bf16 {vr(A_O+12*t,16)}, {vr(b+6+4*e,4)}, {vr(s+8*e,8)}, v{A_IDX}"
def period(a, j, t, last=False, extra=None):
    cur, oth = (A_S, A_S + 16) if t % 2 == 0 else (A_S + 16, A_S)
    pb = pv(j, t - 1, oth, 1) if t > 0 else pv((j - 1) % NBUF, 7, oth, 1)
    qa, qb = qk(j, t + 1, oth) if t < 7 else qk((j + 1) % NBUF, 0, oth)
    if last and t == 7: qa = qb = None
    i = 0
    for n, m in zip(GAPS, (pb, qa, qb, pv(j, t, cur, 0), None)):
        for _ in range(n):
            a(f"v_exp_f32 v{cur+i}, v{cur+i}"); i += 1
            if extra and i in extra: a(extra[i])
        if m: a(m)

def role_att(a):
    a("s_setprio 1")
    a(f"s_mul_i32 s36, s{S_W}, {16*KT}\ns_add_u32 s36, s36, {KF}")
    srd(a, 40, P_WS, "s36", 16 * KT)
    a(f"v_lshlrev_b32 v{A_K0}, 4, v0\nv_and_b32 v6, 31, v0\nv_lshrrev_b32 v7, 5, v0\nv_lshlrev_b32 v250, 6, v0\ns_lshl_b32 s78, s{S_W}, 12\ns_add_u32 s79, s78, 0x4000")
    a(f"s_lshl_b32 s37, s{S_W}, 1\ns_xor_b32 s37, s37, 6\nv_lshlrev_b32 v5, 3, v0")
    for t in range(0, 8, 2):
        a(f"s_xor_b32 s36, s37, {t}\ns_mul_i32 s36, s36, 1280\ns_add_u32 s36, s36, {QST}\nv_add_u32 v{A_S+t}, s36, v{A_K0}\nv_add_u32 v{A_S+t+1}, s36, v5")
    for t in range(8):
        a(f"ds_read_b128 {vr(A_Q+6*t,4)}, v{A_S+(t&6)} offset:{1280*(t&1)}\nv_mov_b64 {vr(A_Q+6*t+4,2)}, 0")
    a("s_mov_b32 exec_hi, 0")
    for t in range(8):
        a(f"ds_read_b64 {vr(A_Q+6*t+4,2)}, v{A_S+(t&6)+1} offset:{1280*(t&1) + 1024}")
    a("s_mov_b32 exec_hi, -1")
    a(f"v_lshlrev_b32 v{A_KT}, 3, v0\nv_add_u32 v{A_KT}, {K_T}, v{A_KT}\nv_mov_b32 v5, 0x40000000\nv_cmp_lt_u32 vcc, 31, v0\ns_nop 1\nv_cndmask_b32 v{A_KT}, v{A_KT}, v5, vcc")
    a(f"v_lshlrev_b32 v{A_V}, 8, v7\nv_lshlrev_b32 v251, 7, v7\nv_add_u32 v251, 256, v251\nv_cmp_lt_u32 vcc, 15, v6\ns_nop 1\nv_cndmask_b32 v{A_V}, v{A_V}, v251, vcc")
    a(f"v_lshl_add_u32 v{A_V}, v6, 4, v{A_V}\nv_cmp_lt_u32 vcc, 20, v6\ns_nop 1\nv_cndmask_b32 v{A_V}, v{A_V}, v5, vcc")
    a("v_bfe_u32 v251, v0, 1, 2\nv_lshlrev_b32 v251, 14, v251\nv_bfe_u32 v5, v0, 3, 2\nv_lshl_add_u32 v251, v5, 6, v251\nv_and_b32 v5, 1, v0\nv_lshl_add_u32 v251, v5, 3, v251")
    a(f"s_lshl_b32 s76, s{S_TB}, 9\ns_lshr_b32 s36, s{S_W}, 1\ns_lshl_b32 s36, s36, 8\ns_add_u32 s76, s76, s36")
    a(f"v_mov_b32 v{A_IDX}, 0xdddddddd\ns_mov_b32 s39, 0")
    poll(a, [f"buffer_load_dword v6, v250, s[{SF}:{SF+3}], s78 offen offset:{F1+4}{SC}",
             f"buffer_load_dword v7, v250, s[{SF}:{SF+3}], s79 offen offset:{F1+4}{SC}",
             f"buffer_load_dwordx2 {vr(A_G,2)}, v251, s[{SF}:{SF+3}], s76 offen offset:{F1}{SC}"], [6, 7, A_G + 1], sleep=1)
    stamp(a, 6)
    a("L_att_start:")
    kv_load(a, 0, "0")
    a(f"s_mov_b32 s64, {KT}"); kv_load(a, 1, "s64")
    a(f"s_mov_b32 s64, {2*KT}"); kv_load(a, 2, "s64")
    for r in range(A_O, A_O + 100, 2): a(f"v_mov_b64 {vr(r,2)}, 0")
    for r in range(A_S + 24, A_S + 32, 2): a(f"v_mov_b64 {vr(r,2)}, 0")
    for r in range(A_KV + 14 * 3 + 10, A_KV + 14 * 3 + 14, 2): a(f"v_mov_b64 {vr(r,2)}, 0")
    a("s_mov_b32 s65, 3\ns_waitcnt vmcnt(8) lgkmcnt(0)")
    stamp(a, 7)
    for m in qk(0, 0, A_S): a(m)
    a.nop(12)
    def keytile(j, last=False):
        for t in range(8):
            extra = {}
            if t == 1 and not last:
                x = Asm(); x(f"s_add_u32 s64, s64, {KT}"); kv_load(x, (j - 1) % NBUF, "s64")
                extra = {3: x.l[0] + "\n" + x.l[1], 6: x.l[2], 9: x.l[3], 12: x.l[4]}
            if t == 7 and not last:
                extra = {3: "s_waitcnt vmcnt(8)"}
            if last and t >= 2:
                o = A_O + 12 * (t - 2)
                extra = {3 + 3 * i: f"ds_write_b128 v6, {vr(o+4*i,4)} offset:{3072*(t-2) + 1024*i}" for i in range(3)}
            period(a, j, t, last, extra)
    a(".p2align 3")
    a("L_att_loop:")
    for j in range(3): keytile(j)
    a("s_cmp_eq_u32 s65, 0\ns_cbranch_scc1 L_att_last")
    keytile(3)
    a("s_sub_u32 s65, s65, 1\ns_branch L_att_loop")
    a("L_att_last:"); stamp(a, 8)
    lds_spin(a, C_G1B, 4, 6, 7)
    a(f"s_mul_i32 s36, s{S_W}, 18432\ns_add_u32 s36, s36, {SCR}\nv_add_u32 v6, s36, v{A_K0}")
    keytile(3, True)
    a.nop(2)
    a(pv(3, 7, A_S + 16, 1))
    a("s_setprio 3")
    stamp(a, 9)
    lds_arrive(a, C_ATT, 6, 7)
    for j in (1, 2, 3):
        a(f"s_xor_b32 s36, s{S_W}, {j}\ns_mul_i32 s36, s36, 18432\ns_add_u32 s36, s36, {SCR + 3072*(6 ^ (2*j))}\nv_add_u32 v{A_S+j}, s36, v{A_K0}")
    a(f"s_mul_i32 s66, s39, 12\ns_add_u32 s66, s66, 4\ns_waitcnt vmcnt(0)")
    lds_spin(a, C_ATT, "s66", 6, 7)
    stamp(a, 10)
    P = A_KV
    for j in (1, 2, 3):
        for i in range(6):
            a.ds(f"ds_read_b128 {vr(P+24*(j-1)+4*i,4)}, v{A_S+j} offset:{1024*i}", ("p", j))
    T = A_S + 4
    a(f"s_mul_i32 s36, s{S_TB}, 81920\ns_add_u32 s36, s36, {OF}")
    srd(a, 52, P_WS, "s36", 81920)
    a(f"v_and_b32 v{T+6}, 15, v0\nv_lshlrev_b32 v{T+6}, 4, v{T+6}\nv_bfe_u32 v{T+7}, v0, 4, 1\nv_lshl_add_u32 v{T+6}, v{T+7}, 10, v{T+6}")
    a(f"v_lshrrev_b32 v{T+7}, 5, v0\nv_lshl_add_u32 v{T+7}, v{T+7}, 8, v{T+6}\nv_lshlrev_b32 v{T+8}, 16, v{A_G}")
    a(f"s_lshr_b32 s66, s{S_HB}, 1\ns_mul_i32 s66, s66, 20480\ns_lshr_b32 s36, s{S_W}, 1\ns_lshl_b32 s36, s36, 11\ns_add_u32 s66, s66, s36")
    a(f"s_and_b32 s36, s{S_HB}, 1\ns_lshl_b32 s36, s36, 1\ns_and_b32 s67, s{S_W}, 1\ns_add_u32 s36, s36, s67")
    a("s_lshl_b32 s67, s36, 12\ns_add_u32 s67, s67, s66\ns_lshl_b32 s36, s36, 8\ns_add_u32 s66, s66, s36\ns_add_u32 s66, s66, 16384")
    a(f"s_lshl_b32 s77, s{S_TB}, 3\ns_add_u32 s77, s77, s{S_HB}\ns_lshl_b32 s77, s77, 2\ns_add_u32 s77, s77, s{S_W}\ns_lshl_b32 s77, s77, 6\ns_add_u32 s77, s77, {F3}")
    O = A_O + 72
    for j in (1, 2, 3):
        a.wait(lg=("p", j))
        for i in range(0, 24, 2):
            a(f"v_pk_add_f32 {vr(O+i,2)}, {vr(O+i,2)}, {vr(P+24*(j-1)+i,2)}")
    a(f"v_mov_b32 v{T}, v{O+8}\nv_mov_b32 v{T+2}, v{O+8}\nv_mov_b32 v{T+1}, v{O+20}\nv_mov_b32 v{T+4}, v{O+20}\ns_nop 0")
    a(f"v_permlane32_swap_b32 v{T}, v{T+2}\nv_permlane32_swap_b32 v{T+1}, v{T+4}")
    a("s_cmp_lg_u32 s39, 0\ns_cbranch_scc1 L_att_ok")
    a(f"s_mov_b32 s68, {fbits(2.0**-80)}\ns_mov_b32 s69, {fbits(2.0**80)}")
    a(f"v_cmp_nle_f32 s[80:81], s68, v{T+2}\nv_cmp_nge_f32 s[82:83], s69, v{T+2}\nv_cmp_nle_f32 s[84:85], s68, v{T+4}\nv_cmp_nge_f32 s[86:87], s69, v{T+4}")
    a("s_nop 1\ns_or_b64 s[80:81], s[80:81], s[82:83]\ns_or_b64 s[84:85], s[84:85], s[86:87]\ns_or_b64 s[80:81], s[80:81], s[84:85]")
    a(f"s_cselect_b32 s36, 0x101, 1\nv_mov_b32 v6, {C_BAD}\nv_mov_b32 v7, s36\ns_mov_b64 exec, 1\nds_add_u32 v6, v7\ns_mov_b64 exec, -1")
    a("L_att_ok:")
    a(f"v_rcp_f32 v{T+2}, v{T+2}\nv_rcp_f32 v{T+4}, v{T+4}\ns_nop 0\nv_mul_f32 v{T+2}, v{T+2}, v{T+8}\nv_mul_f32 v{T+4}, v{T+4}, v{T+8}")
    for e in range(2):
        for i in range(0, 12, 2):
            a(f"v_pk_mul_f32 {vr(O+12*e+i,2)}, {vr(O+12*e+i,2)}, {vr(T+2+2*e,2)} op_sel_hi:[1,0]")
    for e in range(2):
        for i in range(4): a(f"v_cvt_pk_bf16_f32 v{P+4*e+i}, v{O+12*e+2*i}, v{O+12*e+2*i+1}")
        for i in range(2): a(f"v_cvt_pk_bf16_f32 v{P+8+2*e+i}, v{O+12*e+8+2*i}, v{O+12*e+9+2*i}")
    a(f"buffer_store_dwordx4 {vr(P,4)}, v{T+7}, s[52:55], s67 offen{SC}")
    a(f"buffer_store_dwordx4 {vr(P+4,4)}, v{T+7}, s[52:55], s67 offen offset:512{SC}")
    a(f"s_mov_b32 exec_hi, 0\nbuffer_store_dwordx4 {vr(P+8,4)}, v{T+6}, s[52:55], s66 offen{SC}\ns_mov_b64 exec, -1")
    stamp(a, 11)
    a("s_cmp_lg_u32 s39, 0\ns_cbranch_scc1 L_att_redo_done")
    lds_spin(a, C_BAD, 4, 6, 7, mask=0xff)
    a("s_lshr_b32 s94, s94, 8\ns_cbranch_scc0 L_att_done")
    M = A_O
    a("s_waitcnt vmcnt(0)")
    for t in range(8): a(f"v_mov_b32 v{M+t}, 0xff800000")
    a("s_mov_b32 s64, 0\ns_mov_b32 s39, 1")
    a("L_slow_loop:")
    kv_load(a, 0, "s64")
    a("s_waitcnt vmcnt(0)")
    for t in range(8):
        for m in qk(0, t, A_S): a(m)
        a.nop(16)
        for i in range(0, 16, 2): a(f"v_max3_f32 v{M+t}, v{M+t}, v{A_S+i}, v{A_S+i+1}")
    a(f"s_add_u32 s64, s64, {KT}\ns_cmp_lt_u32 s64, {16*KT}\ns_cbranch_scc1 L_slow_loop")
    a(f"v_lshlrev_b32 v{A_S}, 2, v0\ns_lshl_b32 s36, s{S_W}, 11\ns_add_u32 s36, s36, {SCR}\nv_add_u32 v{A_S}, s36, v{A_S}")
    for t in range(8):
        a(f"s_xor_b32 s36, s37, {t}\ns_lshl_b32 s36, s36, 8\nv_add_u32 v{A_S+1}, s36, v{A_S}\nds_write_b32 v{A_S+1}, v{M+t}")
    lds_arrive(a, C_ATT, 6, 7)
    lds_spin(a, C_ATT, 8, 6, 7)
    a(f"v_and_b32 v{A_S}, 31, v0\nv_lshlrev_b32 v{A_S}, 2, v{A_S}\nv_add_u32 v{A_S}, {SCR}, v{A_S}")
    for t in range(8):
        a(f"s_xor_b32 s36, s37, {t}\ns_lshl_b32 s36, s36, 8\nv_add_u32 v{A_S+1}, s36, v{A_S}")
        for w in range(4):
            a(f"ds_read2_b32 {vr(A_S+2+2*w,2)}, v{A_S+1} offset0:0 offset1:32\nv_add_u32 v{A_S+1}, 2048, v{A_S+1}")
        a("s_waitcnt lgkmcnt(0)")
        for i in range(0, 8, 2): a(f"v_max3_f32 v{M+t}, v{M+t}, v{A_S+2+i}, v{A_S+3+i}")
        m, h1, h2 = M + t, A_S + 2, A_S + 3
        a(f"v_sub_f32 v{m}, 0, v{m}\nv_and_b32 v{h1}, 0xffff0000, v{m}\nv_sub_f32 v{m}, v{m}, v{h1}\nv_and_b32 v{h2}, 0xffff0000, v{m}\nv_sub_f32 v{m}, v{m}, v{h2}")
        a(f"v_lshrrev_b32 v{h1}, 16, v{h1}\nv_or_b32 v{h1}, v{h1}, v{h2}\nv_lshrrev_b32 v{m}, 16, v{m}")
        a(f"s_mov_b32 exec_lo, 0\nv_mov_b32 v{A_Q+6*t+4}, v{h1}\nv_mov_b32 v{A_Q+6*t+5}, v{m}\ns_mov_b32 exec_lo, -1")
    a(f"s_mov_b32 exec_lo, 0\nv_mov_b32 v{A_KT}, {K_C}\ns_mov_b32 exec_lo, -1")
    lds_arrive(a, C_ATT, 6, 7)
    lds_spin(a, C_ATT, 12, 6, 7)
    a("s_setprio 1\ns_branch L_att_start")
    a("L_att_redo_done:")
    lds_arrive(a, C_ATT, 6, 7)
    lds_spin(a, C_ATT, 20, 6, 7)
    a("L_att_done:")
    flag(a, "s77", 6)
    stamp(a, 12)
    final_addr(a)

def kernel():
    a = Asm()
    a(f".p2align 8\n.type {L},@function\n{L}:")
    a("s_cmp_ge_u32 s2, 256\ns_cbranch_scc1 L_end")
    if STAMP:
        a("v_mov_b32 v254, 0\nv_mov_b32 v255, 0"); stamp(a, 0)
    a("s_load_dwordx16 s[4:19], s[0:1], 0\ns_load_dwordx8 s[20:27], s[0:1], 64\ns_load_dwordx4 s[28:31], s[0:1], 96")
    a(f"v_lshrrev_b32 v1, 6, v0\nv_and_b32 v0, 63, v0\nv_readfirstlane_b32 s{S_W}, v1")
    a(f"s_and_b32 s35, s2, 7\ns_lshl_b32 s{S_TB}, s35, 2\ns_bfe_u32 s36, s2, 0x20003\ns_add_u32 s{S_TB}, s{S_TB}, s36\ns_lshr_b32 s{S_HB}, s2, 5")
    a(f"v_lshlrev_b32 v1, 2, v0\nv_add_u32 v1, {CNT}, v1\nv_mov_b32 v2, 0\nds_write_b32 v1, v2")
    a(f"s_sub_u32 s37, s{S_W}, 4\ns_waitcnt lgkmcnt(0)\ns_barrier")
    srd(a, SF, P_WS, FL, FLSZ)
    a(f"s_cmp_lt_u32 s{S_W}, 4\ns_cbranch_scc1 L_q")
    role_rows(a)
    role_gemm(a)
    a("s_branch L_final")
    a("L_q:")
    role_q(a)
    role_att(a)
    a("L_final:")
    final(a)
    a("L_fin:"); endpgm(a)
    a("L_end:\ns_endpgm")
    return a

def build(path):
    a = kernel()
    out = open("cdna_kernels/" + NAME + ".s.ref").read().split("; Override launch")[0]
    out += f"; @launch grid=(256,1,1) block=(512,1,1) lds={LDS_BYTES}\n"
    out += f'.amdgcn_target "amdgcn-amd-amdhsa--gfx950"\n.text\n.globl {L}\n' + a.text()
    out += f""".section .rodata,"a"
.p2align 6
.amdhsa_kernel {L}
  .amdhsa_next_free_vgpr 256
  .amdhsa_next_free_sgpr 102
  .amdhsa_accum_offset 256
  .amdhsa_group_segment_fixed_size 0
  .amdhsa_kernarg_size 112
  .amdhsa_user_sgpr_count 2
  .amdhsa_user_sgpr_kernarg_segment_ptr 1
  .amdhsa_system_sgpr_workgroup_id_x 1
.end_amdhsa_kernel
"""
    bad = lint(a.l, "k")
    for m in bad: print(m)
    open(path, "w").write(out)
    print("written", path, "lint issues:", len(bad), "lines", len(a.l))

if __name__ == "__main__":
    STAMP = len(sys.argv) > 2
    build(sys.argv[1] if len(sys.argv) > 1 else "cdna_kernels/" + NAME + ".s")
```

```python
import sys, math, os, struct
from asmlib import *

NAME = "gated_mix__grouped_kv_mqa__mixer_token_mlp__prompt"
L = NAME + "_kernel"
E = os.environ.get
HF, KF, OF, GF, FL = 0, 0x280000, 0x2B0000, 0x530000, 0x750000
F1, F2, F3, GEN, FLSZ = 0, 0x10000, 0x20000, 0x30000, 0x30100
KT = 2816
K_T, V_A, V_B, K_C = 1024, 1280, 2048, 1856
WQ, XA, WKV, HROW, CNT = 0, 40960, 122880, 148480, 159232
QST = HROW
RING, SCR = 0, 65536
LDS_BYTES = CNT + 256
C_R, C_G1A, C_G1B, C_ATT, C_BAD, C_NON, C_X, C_KV = [CNT + 4 * i for i in range(8)]
P_X, P_WQ, P_WK, P_WV, P_WO, P_W1, P_B1, P_W2, P_B2, P_GW, P_OUT, P_DBG, P_WS = 4, 6, 8, 10, 12, 16, 18, 20, 22, 24, 26, 28, 30
S_W, S_TB, S_HB, S_NON = 32, 33, 34, 3
SF = 72
QSCALE = math.log2(math.e) / math.sqrt(20.0)
SC = " sc1"
def fbits(x):
    return "0x%08x" % struct.unpack("<I", struct.pack("<f", x))[0]

def srd(a, d, ptr, off, nbytes):
    if off == 0:
        a(f"s_mov_b32 s{d}, s{ptr}\ns_mov_b32 s{d+1}, s{ptr+1}")
    else:
        a(f"s_add_u32 s{d}, s{ptr}, {off}\ns_addc_u32 s{d+1}, s{ptr+1}, 0")
    a(f"s_mov_b32 s{d+2}, {nbytes}\ns_mov_b32 s{d+3}, 0x20000")

STAMP = False
ST = 0xA00000
def stamp(a, i):
    if not STAMP: return
    a(f"s_memrealtime s[96:97]\ns_memtime s[98:99]\ns_waitcnt lgkmcnt(0)\nv_writelane_b32 v254, s96, {i}\nv_writelane_b32 v255, s98, {i}"); a.lg = []
def endpgm(a):
    if STAMP:
        a("s_waitcnt vmcnt(0)"); stamp(a, 15)
        a(f"s_mov_b64 exec, 0xffff\ns_lshl_b32 s98, s2, 3\ns_add_u32 s98, s98, s{S_W}\ns_lshl_b32 s98, s98, 7\ns_add_u32 s98, s98, {ST}\nv_lshl_add_u32 v1, v0, 3, s98")
        a(f"global_store_dwordx2 v1, v[254:255], s[{P_WS}:{P_WS+1}]")
    a("s_endpgm")

_uid = [0]
def uid():
    _uid[0] += 1; return _uid[0]
def lds_arrive(a, cnt, va, vt):
    a(f"v_mov_b32 v{va}, {cnt}\nv_mov_b32 v{vt}, 1\ns_waitcnt lgkmcnt(0)\ns_mov_b64 exec, 1\nds_add_u32 v{va}, v{vt}\ns_mov_b64 exec, -1")
    a.lg = []
def lds_spin(a, cnt, target, va, vt, sleep=0, mask=None):
    u = uid()
    a(f"v_mov_b32 v{va}, {cnt}\ns_mov_b32 s95, 0x40000")
    a(f"L_spin{u}:\nds_read_b32 v{vt}, v{va}\ns_waitcnt lgkmcnt(0)\nv_readfirstlane_b32 s94, v{vt}\ns_nop 0")
    if mask: a(f"s_and_b32 s93, s94, {mask}\ns_cmp_ge_u32 s93, {target}")
    else: a(f"s_cmp_ge_u32 s94, {target}")
    a(f"s_cbranch_scc1 L_spun{u}")
    if sleep: a(f"s_sleep {sleep}")
    a(f"s_sub_u32 s95, s95, 1\ns_cbranch_scc0 L_spin{u}\nL_spun{u}:")
    a.lg = []
def poll(a, loads, checks, sleep=2, issued=False):
    u = uid()
    a("s_mov_b32 s95, 0x8000")
    if issued: a(f"s_branch L_pollw{u}")
    a(f"L_poll{u}:")
    for x in loads: a(x)
    a(f"L_pollw{u}:\ns_waitcnt vmcnt(0)")
    a(f"v_cmp_ne_u32 vcc, s{S_NON}, v{checks[0]}")
    for c in checks[1:]:
        a(f"v_cmp_ne_u32 s[92:93], s{S_NON}, v{c}\ns_nop 0\ns_or_b64 vcc, vcc, s[92:93]")
    a(f"s_nop 0\ns_cmp_eq_u64 vcc, 0\ns_cbranch_scc1 L_polled{u}\ns_sleep {sleep}\ns_sub_u32 s95, s95, 1\ns_cbranch_scc0 L_poll{u}\nL_polled{u}:")
    a.vm = []
def flag(a, soff, vt):
    a(f"v_mov_b32 v{vt}, 0\nv_mov_b32 v{vt+1}, s{S_NON}\ns_waitcnt vmcnt(0)\ns_mov_b64 exec, 1")
    a(f"buffer_store_dword v{vt+1}, v{vt}, s[{SF}:{SF+3}], {soff} offen{SC}\ns_mov_b64 exec, -1")
    a.vm = [None]

def half_sum(a, r, t):
    for st in ("quad_perm:[1,0,3,2]", "quad_perm:[2,3,0,1]", "row_half_mirror", "row_mirror"):
        a(f"s_nop 1\nv_add_f32_dpp v{r}, v{r}, v{r} {st} row_mask:0xf bank_mask:0xf")
    a(f"v_mov_b32 v{t}, v{r}\ns_nop 1\nv_permlane16_swap_b32 v{r}, v{t}\nv_add_f32 v{r}, v{r}, v{t}")

def w160_patterns(a, vt, outs):
    for i in range(5):
        a(f"v_add_u32 v{vt}, {64*i}, v0")
        a(f"v_mul_u32_u24 v{vt+1}, 205, v{vt}\nv_lshrrev_b32 v{vt+1}, 11, v{vt+1}")
        a(f"v_mul_u32_u24 v{vt+2}, 10, v{vt+1}\nv_sub_u32 v{vt+2}, v{vt}, v{vt+2}\nv_lshlrev_b32 v{vt+2}, 4, v{vt+2}")
        outs(i, vt + 1, vt + 2)
def tr160_addr(a, vd, vt):
    a(f"v_lshrrev_b32 v{vt}, 5, v0\nv_lshlrev_b32 v{vt}, 4, v{vt}")
    a(f"v_bfe_u32 v{vd}, v0, 2, 3\nv_add_u32 v{vt}, v{vt}, v{vd}")
    a(f"v_mul_u32_u24 v{vt}, 160, v{vt}\nv_and_b32 v{vd}, 3, v0\nv_lshl_add_u32 v{vd}, v{vd}, 3, v{vt}")
def xfrag_addr(a, vd, vt, base):
    a(f"v_and_b32 v{vt}, 15, v0\nv_lshrrev_b32 v{vt+1}, 4, v0\nv_xor_b32 v{vt+1}, v{vt+1}, v{vt}")
    a(f"v_lshrrev_b32 v{vt+2}, 2, v{vt}\nv_mul_u32_u24 v{vt+2}, 5120, v{vt+2}\nv_and_b32 v{vt}, 3, v{vt}\nv_lshl_add_u32 v{vt+2}, v{vt}, 8, v{vt+2}\nv_add_u32 v{vt+2}, {base}, v{vt+2}")
    for k in range(4):
        a(f"v_xor_b32 v{vt}, {4*k}, v{vt+1}\nv_lshl_add_u32 v{vd+k}, v{vt}, 4, v{vt+2}")
XF = 64
def unpack(a, dst, src, n):
    for j in range(n):
        a(f"v_lshlrev_b32 v{dst+2*j}, 16, v{src+j}\nv_and_b32 v{dst+2*j+1}, 0xffff0000, v{src+j}")
def rnd(a, r):
    a(f"v_cvt_pk_bf16_f32 v{r}, v{r}, v{r}\nv_lshlrev_b32 v{r}, 16, v{r}")

def role_rows(a):
    a("s_setprio 3")
    a(f"s_load_dword s{S_NON}, s[{SF}:{SF+1}], {GEN}")
    srd(a, 40, P_X, 0, 2048 * 1280)
    a(f"s_lshl_b32 s35, s{S_TB}, 6\ns_lshl_b32 s36, s{S_HB}, 3\ns_add_u32 s36, s36, s35\ns_lshl_b32 s38, s37, 1\ns_add_u32 s36, s36, s38\ns_mul_i32 s39, s36, 1280")
    a("v_and_b32 v52, 31, v0\nv_lshlrev_b32 v52, 3, v52\nv_lshrrev_b32 v53, 5, v0\nv_mul_u32_u24 v1, 1280, v53\nv_add_u32 v1, v1, v52")
    for j in range(5):
        a(f"buffer_load_dwordx2 {vr(2+2*j,2)}, v1, s[40:43], s39 offen offset:{256*j}")
    a(f"s_lshr_b32 s36, s{S_HB}, 1\ns_lshl_b32 s36, s36, 4\ns_add_u32 s64, s35, s36")
    a("s_lshl_b32 s38, s37, 2\nv_lshrrev_b32 v54, 4, v0\nv_add_u32 v54, s38, v54\nv_and_b32 v55, 15, v0\nv_xor_b32 v55, v55, v54\nv_mul_u32_u24 v54, 1280, v54\nv_lshl_add_u32 v54, v55, 4, v54")
    a(f"s_mul_i32 s36, s64, 1280\ns_mul_i32 s38, s37, 5120")
    for j in range(5):
        a(f"s_add_u32 m0, s38, {XA + 3*20480 + 768*j}\ns_nop 0")
        a(f"buffer_load_dwordx4 v54, s[40:43], s36 offen offset:{256*j} lds")
    a(f"s_and_b32 s36, s{S_HB}, 1\ns_cmp_eq_u32 s36, 0\ns_cselect_b32 s48, s{P_WK}, s{P_WV}\ns_cselect_b32 s49, s{P_WK+1}, s{P_WV+1}")
    a("s_mov_b32 s50, 25600\ns_mov_b32 s51, 0x20000\nv_lshlrev_b32 v55, 4, v0\ns_mul_i32 s36, s37, 6144")
    for h in range(2):
        a(f"s_add_u32 m0, s36, {WKV}\ns_nop 0")
        for i in range(3):
            a(f"buffer_load_dwordx4 v55, s[48:51], s36 offen offset:{1024*i} lds")
        if h == 0: a("s_add_u32 s36, s36, 3072")
    a(f"s_cmp_lg_u32 s37, 3\ns_cbranch_scc1 L_r1\nbuffer_load_dwordx4 v55, s[48:51], s36 offen offset:3072 lds\nL_r1:")
    srd(a, 44, P_GW, 0, 1280)
    a("s_waitcnt vmcnt(11)"); stamp(a, 1)
    X, T = 12, 32
    unpack(a, X, 2, 10)
    a(f"v_pk_add_f32 v[56:57], {vr(X,2)}, {vr(X+2,2)}\nv_pk_add_f32 v[58:59], {vr(X+4,2)}, {vr(X+6,2)}")
    for j in range(4, 10, 2):
        a(f"v_pk_add_f32 v[56:57], v[56:57], {vr(X+2*j,2)}\nv_pk_add_f32 v[58:59], v[58:59], {vr(X+2*j+2,2)}")
    a("v_pk_add_f32 v[56:57], v[56:57], v[58:59]\nv_add_f32 v56, v56, v57")
    half_sum(a, 56, 57)
    a(f"v_mul_f32 v56, {fbits(1.0/640)}, v56")
    for j in range(10):
        a(f"v_pk_add_f32 {vr(T+2*j,2)}, {vr(X+2*j,2)}, v[56:57] op_sel_hi:[1,0] neg_lo:[0,1] neg_hi:[0,1]")
    a(f"v_pk_mul_f32 v[58:59], {vr(T,2)}, {vr(T,2)}\nv_pk_mul_f32 v[60:61], {vr(T+2,2)}, {vr(T+2,2)}")
    for j in range(2, 10, 2):
        a(f"v_pk_fma_f32 v[58:59], {vr(T+2*j,2)}, {vr(T+2*j,2)}, v[58:59]\nv_pk_fma_f32 v[60:61], {vr(T+2*j+2,2)}, {vr(T+2*j+2,2)}, v[60:61]")
    a("v_pk_add_f32 v[58:59], v[58:59], v[60:61]\nv_add_f32 v58, v58, v59")
    rnd(a, 56)
    x = Asm(); half_sum(x, 58, 59)
    y = Asm()
    for j in range(10):
        y(f"v_pk_add_f32 {vr(T+2*j,2)}, {vr(X+2*j,2)}, v[56:57] op_sel_hi:[1,0] neg_lo:[0,1] neg_hi:[0,1]")
    for ln in x.l:
        if ln == "s_nop 1": a(y.l.pop(0)); a(y.l.pop(0))
        else: a(ln)
    a(f"v_mul_f32 v58, {fbits(1.0/640)}, v58"); rnd(a, 58)
    a(f"v_add_f32 v58, {fbits(1e-5)}, v58"); rnd(a, 58)
    a("v_sqrt_f32 v58, v58")
    for j in range(10):
        a(f"v_cvt_pk_bf16_f32 v{2+j}, v{T+2*j}, v{T+2*j+1}")
    rnd(a, 58)
    a("v_rcp_f32 v58, v58")
    unpack(a, T, 2, 10)
    for j in range(10):
        a(f"v_pk_mul_f32 {vr(T+2*j,2)}, {vr(T+2*j,2)}, v[58:59] op_sel_hi:[1,0]")
    for j in range(10):
        a(f"v_cvt_pk_bf16_f32 v{2+j}, v{T+2*j}, v{T+2*j+1}")
    a(f"s_mul_i32 s36, s37, 2688\ns_add_u32 s36, s36, {HROW}\nv_mul_u32_u24 v56, 1344, v53\nv_add3_u32 v56, v56, v52, s36")
    for j in range(5):
        a(f"ds_write_b64 v56, {vr(2+2*j,2)} offset:{256*j}")
    stamp(a, 2)
    a("s_waitcnt vmcnt(0)")
    lds_arrive(a, C_R, 56, 57)
    a(f"s_mul_i32 s{S_NON}, s{S_NON}, 1664525\ns_add_u32 s{S_NON}, s{S_NON}, 1013904223")
    GR = 168
    for j in range(5):
        a(f"buffer_load_dwordx2 {vr(GR+2*j,2)}, v52, s[44:47], 0 offen offset:{256*j}")
    a(f"v_mov_b32 v56, {C_NON}\nv_mov_b32 v57, s{S_NON}\nds_write_b32 v56, v57")
    a(f"s_cmp_lt_u32 s37, 2\ns_cbranch_scc1 L_kv")
    srd(a, 52, P_WS, HF, 64 * 40960)
    a(f"v_bfe_u32 v2, v0, 2, 2\nv_mul_u32_u24 v2, 1344, v2\nv_lshrrev_b32 v3, 4, v0\nv_lshl_add_u32 v2, v3, 5, v2\nv_and_b32 v4, 3, v0\nv_lshl_add_u32 v2, v4, 3, v2")
    a(f"s_sub_u32 s36, s37, 2\ns_mul_i32 s65, s36, 640\ns_add_u32 s65, s65, {HROW}\nv_add_u32 v2, s65, v2")
    a("v_and_b32 v4, 15, v0\nv_lshlrev_b32 v4, 4, v4\nv_lshl_add_u32 v4, v3, 10, v4")
    a(f"s_lshr_b32 s66, s64, 5\ns_mul_i32 s66, s66, 40960\ns_and_b32 s65, s{S_HB}, 3\ns_lshl_b32 s65, s65, 8\ns_add_u32 s66, s66, s65")
    a(f"s_mul_i32 s36, s36, 20480\ns_add_u32 s66, s66, s36")
    lds_spin(a, C_R, 4, 56, 57); stamp(a, 3)
    for u in range(5):
        a(f"ds_read_b64_tr_b16 {vr(64+4*u,2)}, v2 offset:{128*u}\nds_read_b64_tr_b16 {vr(66+4*u,2)}, v2 offset:{128*u + 4*1344}")
    for u in range(5):
        a(f"s_waitcnt lgkmcnt({8-2*u})")
        a(f"buffer_store_dwordx4 {vr(64+4*u,4)}, v4, s[52:55], s66 offen{SC}")
        if u < 4: a("s_add_u32 s66, s66, 4096")
    a("s_waitcnt vmcnt(5)\ns_branch L_gate")
    a("L_kv:")
    srd(a, 52, P_WS, KF, 64 * KT)
    a("v_lshrrev_b32 v3, 4, v0\nv_lshlrev_b32 v2, 3, v3\nv_bfe_u32 v4, v0, 2, 2\nv_add_u32 v2, v2, v4\nv_mul_u32_u24 v2, 40, v2")
    a(f"v_and_b32 v4, 3, v0\nv_lshlrev_b32 v4, 3, v4\nv_mov_b32 v5, 32\ns_cmp_eq_u32 s37, 1\ns_cselect_b64 vcc, -1, 0\nv_cndmask_b32 v4, v4, v5, vcc")
    a(f"v_add_u32 v2, v2, v4\nv_add_u32 v2, {WKV}, v2\nv_and_b32 v6, 15, v0")
    xfrag_addr(a, 60, 56, XA + 3 * 20480)
    a(f"s_lshr_b32 s65, s64, 5\ns_mul_i32 s65, s65, {KT}\ns_bfe_u32 s66, s64, 0x10004")
    lds_spin(a, C_R, 4, 56, 57); stamp(a, 3)
    WF, AC = 144, 32
    def kvchain(isv):
        def rd(ks):
            b = WF + 4 * (ks % 6)
            a(f"ds_read_b128 {vr(XF+4*ks,4)}, v{60+(ks&3)} offset:{1024*(ks>>2)}")
            a(f"ds_read_b64_tr_b16 {vr(b,2)}, v2 offset:{1280*ks}\nds_read_b64_tr_b16 {vr(b+2,2)}, v2 offset:{1280*ks+160}")
        for ks in range(4): rd(ks)
        for ks in range(20):
            if ks + 4 < 20: rd(ks + 4)
            a(f"s_waitcnt lgkmcnt({3*(min(19, ks+4) - ks)})")
            w = vr(WF + 4 * (ks % 6), 4); x = vr(XF + 4 * ks, 4)
            acc = AC + 4 * (ks & 1)
            a(f"v_mfma_f32_16x16x32_bf16 {vr(acc,4)}, {x if isv else w}, {w if isv else x}, {'0' if ks < 2 else vr(acc,4)}")
    def kvfin():
        a(f"v_pk_add_f32 {vr(AC,2)}, {vr(AC,2)}, {vr(AC+4,2)}\nv_pk_add_f32 {vr(AC+2,2)}, {vr(AC+2,2)}, {vr(AC+6,2)}")
        a(f"v_cvt_pk_bf16_f32 v8, v{AC}, v{AC+1}\nv_cvt_pk_bf16_f32 v9, v{AC+2}, v{AC+3}")
    a(f"s_and_b32 s36, s{S_HB}, 1\ns_cbranch_scc1 L_v")
    kvchain(False)
    a("s_lshl_b32 s66, s66, 4\nv_add_u32 v6, s66, v6")
    a("v_lshrrev_b32 v4, 1, v3\nv_lshlrev_b32 v4, 9, v4\nv_lshl_add_u32 v4, v6, 4, v4\nv_and_b32 v5, 1, v3\nv_lshl_add_u32 v4, v5, 3, v4\ns_nop 0")
    kvfin()
    a(f"s_cmp_eq_u32 s37, 0\ns_cbranch_scc1 L_kvst\nv_lshlrev_b32 v4, 3, v6\nv_add_u32 v4, {K_T}, v4\ns_mov_b64 exec, 0xffff\ns_branch L_kvst")
    a("L_v:")
    kvchain(True)
    a(f"s_mul_i32 s66, s66, 768\ns_add_u32 s65, s65, s66\ns_add_u32 s65, s65, {V_A}\ns_lshl_b32 s36, s37, 9\ns_add_u32 s65, s65, s36\ns_sub_u32 s36, 8, s37")
    a("v_lshrrev_b32 v4, 1, v3\nv_lshlrev_b32 v4, s36, v4\nv_lshl_add_u32 v4, v6, 4, v4\nv_and_b32 v5, 1, v3\nv_lshl_add_u32 v4, v5, 3, v4")
    kvfin()
    a("s_cmp_eq_u32 s37, 0\ns_cbranch_scc1 L_kvst")
    a("s_mov_b32 exec_lo, 0x00100010\ns_mov_b32 exec_hi, 0x00100010\nv_mov_b32 v8, 0x3f803f80\nv_mov_b32 v9, 0x3f803f80")
    a("s_mov_b32 exec_lo, 0x001f001f\ns_mov_b32 exec_hi, 0x001f001f")
    a(f"L_kvst:\nbuffer_store_dwordx2 v[8:9], v4, s[52:55], s65 offen{SC}\ns_mov_b64 exec, -1\ns_waitcnt vmcnt(1)")
    a("L_gate:"); stamp(a, 4)
    unpack(a, T, GR, 10)
    for j in range(10): a(f"v_pk_mul_f32 {vr(T+2*j,2)}, {vr(T+2*j,2)}, {vr(X+2*j,2)}")
    for j in range(10): a(f"v_cvt_pk_bf16_f32 v{GR+j}, v{T+2*j}, v{T+2*j+1}")
    unpack(a, T, GR, 10)
    for j in range(2, 10, 2):
        a(f"v_pk_add_f32 {vr(T,2)}, {vr(T,2)}, {vr(T+2*j,2)}\nv_pk_add_f32 {vr(T+2,2)}, {vr(T+2,2)}, {vr(T+2*j+2,2)}")
    a(f"v_pk_add_f32 v[56:57], {vr(T,2)}, {vr(T+2,2)}\nv_add_f32 v56, v56, v57")
    half_sum(a, 56, 57)
    rnd(a, 56)
    a(f"v_mul_f32 v56, {fbits(-math.log2(math.e))}, v56\nv_exp_f32 v56, v56\ns_nop 0\nv_add_f32 v56, 1.0, v56\nv_rcp_f32 v56, v56\ns_nop 0")
    rnd(a, 56)
    a(f"v_sub_f32 v57, 1.0, v56\nv_cvt_pk_bf16_f32 v56, v56, v57\nv_mov_b32 v57, s{S_NON}\nv_lshlrev_b32 v58, 3, v53")
    a(f"s_lshl_b32 s36, s{S_TB}, 3\ns_add_u32 s36, s36, s{S_HB}\ns_lshl_b32 s36, s36, 6\ns_lshl_b32 s38, s37, 14\ns_add_u32 s36, s36, s38")
    a(f"s_waitcnt vmcnt(0)\ns_mov_b32 exec_lo, 1\ns_mov_b32 exec_hi, 1\nbuffer_store_dwordx2 v[56:57], v58, s[{SF}:{SF+3}], s36 offen offset:{F1}{SC}\ns_mov_b64 exec, -1")
    stamp(a, 5)
    a("s_setprio 0")

def att_polls():
    return [f"buffer_load_dword v252, v250, s[{SF}:{SF+3}], s78 offen offset:{F1+4}{SC}",
            f"buffer_load_dword v253, v250, s[{SF}:{SF+3}], s79 offen offset:{F1+4}{SC}",
            f"buffer_load_dwordx2 {vr(A_G,2)}, v251, s[{SF}:{SF+3}], s76 offen offset:{F1}{SC}"]
def role_q(a):
    srd(a, 40, P_X, 0, 2048 * 1280)
    srd(a, 48, P_WQ, 0, 640 * 1280)
    a(f"s_mul_i32 s65, s{S_HB}, 160")
    def outs(i, vrho, vc):
        a(f"v_lshrrev_b32 v33, 1, v{vrho}\nv_xor_b32 v33, v33, v{vrho}\nv_and_b32 v33, 4, v33\nv_mul_u32_u24 v33, 3, v33\nv_xor_b32 v33, v33, v{vrho}")
        a(f"v_mul_u32_u24 v33, 1280, v33\nv_add3_u32 v{25+i}, v33, v{vc}, s65")
    w160_patterns(a, 30, outs)
    a(f"s_lshr_b32 s36, s{S_HB}, 1\ns_xor_b32 s37, s36, s{S_W}\ns_xor_b32 s37, s37, 3")
    a(f"s_mul_i32 s38, s37, 20480\ns_add_u32 s38, s38, {XA}")
    xfrag_addr(a, 34, 30, "s38")
    a(f"s_lshr_b32 s36, s2, 3\ns_lshl_b32 s36, s36, 2\ns_add_u32 s36, s36, s{S_W}\ns_mul_i32 s36, s36, 6400\nv_min_u32 v30, 49, v0\nv_lshlrev_b32 v30, 7, v30")
    a("buffer_load_dword v42, v30, s[48:51], s36 offen")
    a(f"s_mul_i32 s66, s{S_W}, 40960\ns_mul_i32 s67, s{S_W}, 5120")
    TH = int(E("QTH", "63"))
    def chunk(c):
        if c: a(f"s_add_u32 s66, s66, {4*40960}")
        for i in range(5):
            a(f"s_add_u32 m0, s67, {WQ + c*20480 + i*1024}\ns_nop 0")
            a(f"buffer_load_dwordx4 v{25+i}, s[48:51], s66 offen lds")
            if TH < 63: a(f"s_waitcnt vmcnt({TH})")
    a("s_cmp_eq_u32 s37, 3\ns_cbranch_scc1 L_qcrit")
    a("v_lshrrev_b32 v30, 4, v0\nv_and_b32 v31, 15, v0\nv_xor_b32 v31, v31, v30\nv_mul_u32_u24 v30, 1280, v30")
    for i in range(4):
        a(f"v_xor_b32 v32, {4*i}, v31\nv_lshl_add_u32 v{38+i}, v32, 4, v30")
    a(f"s_lshl_b32 s35, s{S_TB}, 6\ns_lshl_b32 s36, s{S_W}, 4\ns_add_u32 s36, s35, s36\ns_mul_i32 s68, s36, 1280")
    for i in range(4):
        for j in range(5):
            a(f"s_add_u32 m0, s38, {5120*i + 768*j}\ns_nop 0")
            a(f"buffer_load_dwordx4 v{38+i}, s[40:43], s68 offen offset:{256*j} lds")
            if TH < 63: a(f"s_waitcnt vmcnt({TH})")
        if i < 3: a("s_add_u32 s68, s68, 5120")
    a("s_branch L_qx\nL_qcrit:")
    lds_spin(a, C_R, 4, 30, 31, sleep=1)
    a("L_qx:")
    chunk(0)
    a("s_waitcnt vmcnt(5)"); stamp(a, 1)
    for ks in range(20):
        a(f"ds_read_b128 {vr(XF+4*ks,4)}, v{34+(ks&3)} offset:{1024*(ks>>2)}")
    lds_arrive(a, C_X, 30, 31)
    chunk(1)
    tr160_addr(a, 2, 3)
    a("v_add_u32 v3, 51200, v2")
    a(f"s_lshr_b32 s36, s{S_W}, 1\ns_mul_i32 s64, s36, 5120\ns_add_u32 s64, s64, {QST}")
    a(f"s_and_b32 s36, s{S_W}, 1\ns_lshl_b32 s36, s36, 4\nv_and_b32 v4, 15, v0\nv_add_u32 v4, s36, v4\nv_lshrrev_b32 v5, 4, v0")
    for b in range(5):
        a(f"v_add_u32 v6, {4*b}, v5\nv_mul_u32_u24 v7, 52, v6\nv_lshrrev_b32 v7, 8, v7\nv_mul_u32_u24 v8, 5, v7\nv_sub_u32 v8, v6, v8")
        a("v_mul_u32_u24 v7, 1280, v7\nv_lshrrev_b32 v9, 1, v8\nv_lshl_add_u32 v7, v9, 9, v7\nv_and_b32 v9, 1, v8\nv_lshl_add_u32 v7, v9, 3, v7")
        a(f"v_lshrrev_b32 v9, 2, v8\nv_sub_u32 v9, 4, v9\nv_lshl_add_u32 v{10+b}, v4, v9, v7\nv_add_u32 v{10+b}, s64, v{10+b}")
    a(f"v_lshlrev_b32 v250, 6, v0\ns_lshl_b32 s78, s{S_W}, 12\ns_add_u32 s79, s78, 0x4000")
    a("v_bfe_u32 v251, v0, 1, 2\nv_lshlrev_b32 v251, 14, v251\nv_bfe_u32 v5, v0, 3, 2\nv_lshl_add_u32 v251, v5, 6, v251\nv_and_b32 v5, 1, v0\nv_lshl_add_u32 v251, v5, 3, v251")
    a(f"s_lshl_b32 s76, s{S_TB}, 9\ns_lshr_b32 s36, s{S_W}, 1\ns_lshl_b32 s36, s36, 8\ns_add_u32 s76, s76, s36")
    lds_spin(a, C_X, 4, 30, 31)
    chunk(2)
    stamp(a, 2)
    WB, ACC = 144, 184
    def rdq(ks, b):
        r = WB + 20 * (ks & 1) + 4 * b
        ad, off = (2, ks * 5120) if ks < 10 else (3, (ks - 10) * 5120)
        a.ds(f"ds_read_b64_tr_b16 {vr(r,2)}, v{ad} offset:{off + 32*b}", ("w", ks, b))
        a.ds(f"ds_read_b64_tr_b16 {vr(r+2,2)}, v{ad} offset:{off + 32*b + 1280}", ("w", ks, b))
    def steps(lo, hi):
        for b in range(5): rdq(lo, b)
        for ks in range(lo, hi):
            for b in range(5):
                a.wait(lg=("w", ks, b))
                a(f"v_mfma_f32_16x16x32_bf16 {vr(ACC+4*b,4)}, {vr(WB+20*(ks&1)+4*b,4)}, {vr(XF+4*ks,4)}, {'0' if ks == 0 else vr(ACC+4*b,4)}")
                if ks + 1 < hi: rdq(ks + 1, b)
    a("s_waitcnt vmcnt(5)\ns_barrier"); stamp(a, 3)
    chunk(3)
    steps(0, 4)
    chunk(4)
    steps(4, 8)
    a("s_waitcnt vmcnt(10)\ns_barrier")
    steps(8, 12)
    a("s_waitcnt vmcnt(5)\ns_barrier")
    steps(12, 16)
    a("s_waitcnt vmcnt(0)\ns_barrier"); stamp(a, 4)
    for x in att_polls(): a(x)
    steps(16, 20)
    a(f"v_mov_b32 v4, {C_NON}\nds_read_b32 v5, v4\ns_mov_b32 s66, {fbits(QSCALE)}\ns_mov_b32 s67, s66")
    for b in range(5):
        r = ACC + 4 * b
        a(f"v_pk_mul_f32 {vr(r,2)}, {vr(r,2)}, s[66:67]\nv_pk_mul_f32 {vr(r+2,2)}, {vr(r+2,2)}, s[66:67]")
        a(f"v_cvt_pk_bf16_f32 v{r}, v{r}, v{r+1}\nv_cvt_pk_bf16_f32 v{r+1}, v{r+2}, v{r+3}")
        a(f"ds_write_b64 v{10+b}, {vr(r,2)}")
    a(f"s_waitcnt lgkmcnt(0)\nv_readfirstlane_b32 s{S_NON}, v5\ns_barrier"); stamp(a, 5)

G_DMA, G_TR, G_ACT, G_ACC, G_AR, G_W = 1, 5, 9, 16, 96, 176
D = 4
def gemm_addr(a):
    a(f"v_lshrrev_b32 v11, 2, v0")
    a(f"v_lshlrev_b32 v12, 7, v11\nv_and_b32 v13, 3, v0\nv_lshl_add_u32 v12, v13, 3, v12\nv_add_u32 v12, s38, v12")
    a(f"v_bfe_u32 v13, v0, 3, 2")
    for cb in range(4):
        a(f"v_xor_b32 v14, {cb}, v13\nv_lshl_add_u32 v{G_TR+cb}, v14, 5, v12")
    a(f"v_lshlrev_b32 v{G_ACT}, 4, v0\nv_add_u32 v{G_ACT+1}, 4096, v{G_ACT}")
def gemm_dma_addr(a, stride, natural):
    a(f"v_bfe_u32 v12, v0, 4, 2\nv_lshlrev_b32 v12, 1, v12\nv_and_b32 v13, 7, v0\nv_xor_b32 v12, v12, v13\nv_lshrrev_b32 v11, 3, v0")
    if natural:
        a("v_and_b32 v13, 4, v11\nv_add_u32 v11, v11, v13")
    a(f"v_mul_u32_u24 v11, {stride}, v11\nv_lshl_add_u32 v{G_DMA}, v12, 4, v11")
    for i in range(1, 4):
        row = (16 * (i & 1) + 4 * (i >> 1)) if natural else 8 * i
        a(f"v_add_u32 v{G_DMA+i}, {row*stride - 1024*i}, v{G_DMA}")

PAIR = int(E("PAIR", "2"))
class Gemm:
    def __init__(self, a, name, nsteps, wsrd, asrd, s_w, s_a, s_wl, s_al, wstep, astep, w_is_a):
        self.__dict__.update(locals())
    def adv(self, r, lim, step):
        self.a(f"s_add_u32 s{r}, s{r}, {step}\ns_cmp_ge_u32 s{r}, s{lim}\ns_cselect_b32 s36, {step*self.nsteps}, 0\ns_sub_u32 s{r}, s{r}, s36")
    def start(self, srot):
        a = self.a
        for r, lim, step in ((self.s_w, self.s_wl, self.wstep), (self.s_a, self.s_al, self.astep)):
            a(f"s_add_u32 s{lim}, s{r}, {step*self.nsteps}\ns_mul_i32 s36, s{srot}, {step}\ns_add_u32 s{r}, s{r}, s36")
    def dma(self, s, i):
        a = self.a
        if i == 0:
            a(f"s_add_u32 m0, s38, {(s % D)*4096}")
            if s > 0: self.adv(self.s_w, self.s_wl, self.wstep)
            else: a("s_nop 0")
        a.vmem(f"buffer_load_dwordx4 v{G_DMA+i}, {sr(self.wsrd,4)}, s{self.s_w} offen offset:{1024*i} lds", (self.name, "w", s))
    def act(self, s, b):
        a = self.a
        if b == 0 and s > 0: self.adv(self.s_a, self.s_al, self.astep)
        r = G_AR + 20 * (s % D) + 4 * b
        ad, off = (G_ACT, 1024 * b) if b < 4 else (G_ACT + 1, 0)
        a.vmem(f"buffer_load_dwordx4 {vr(r,4)}, v{ad}, {sr(self.asrd,4)}, s{self.s_a} offen offset:{off}{E('ASC', SC)}", (self.name, "a", s))
    def rd(self, s, k):
        r = G_W + 16 * (s & 1) + 2 * k
        self.a.ds(f"ds_read_b64_tr_b16 {vr(r,2)}, v{G_TR+(k>>1)} offset:{(s % D)*4096 + 2048*(k&1)}", (self.name, s))
    def pro_w(self):
        for s in range(D):
            for i in range(4): self.dma(s, i)
    def pro_a(self):
        for s in range(D):
            for b in range(5): self.act(s, b)
    def pro_both(self):
        for s in range(D):
            for i in range(4): self.dma(s, i)
            for b in range(5): self.act(s, b)
    def run(self, after_last_read=None, last_extra=None):
        a = self.a; n = self.nsteps
        a.wait(vm=(self.name, "w", 0))
        for k in range(8): self.rd(0, k)
        for s in range(n):
            need = [(self.name, "a", s)] + ([(self.name, "w", s + 1)] if s + 1 < n else [])
            a.wait(vm=need, lg=(self.name, s))
            if s == n - 1 and after_last_read: after_last_read()
            for m in range(20):
                b, cb = m >> 2, m & 3
                acc = vr(G_ACC + 4 * m, 4)
                w = vr(G_W + 16 * (s & 1) + 4 * cb, 4); x = vr(G_AR + 20 * (s % D) + 4 * b, 4)
                if PAIR and m % PAIR == 0: a("s_setprio 0")
                a(f"v_mfma_f32_16x16x32_bf16 {acc}, {w if self.w_is_a else x}, {x if self.w_is_a else w}, {'0' if s == 0 else acc}")
                if PAIR and m % PAIR == 0: a("s_setprio 2")
                if m & 1:
                    k = m >> 1
                    if k < 8 and s + 1 < n: self.rd(s + 1, k)
                    if s + D < n:
                        if k & 1: self.act(s + D, b)
                        elif k < 8: self.dma(s + D, k >> 1)
                if s == n - 1 and last_extra: last_extra(m)

def gelu8(a, r, t):
    for j in range(0, 8, 2): a(f"v_pk_mul_f32 {vr(t+j,2)}, {vr(r+j,2)}, {vr(r+j,2)}")
    for j in range(0, 8, 2): a(f"v_pk_fma_f32 {vr(t+j,2)}, {vr(t+j,2)}, s[70:71], v[14:15]")
    for j in range(0, 8, 2): a(f"v_pk_mul_f32 {vr(t+j,2)}, {vr(t+j,2)}, {vr(r+j,2)}")
    for j in range(8): a(f"v_exp_f32 v{t+j}, v{t+j}")
    for j in range(0, 8, 2): a(f"v_pk_add_f32 {vr(t+j,2)}, {vr(t+j,2)}, 1.0 op_sel_hi:[1,0]")
    for j in range(8): a(f"v_rcp_f32 v{t+j}, v{t+j}")
    for j in range(0, 8, 2): a(f"v_pk_mul_f32 {vr(r+j,2)}, {vr(r+j,2)}, {vr(t+j,2)}")

WM, WT, WA = 228, 233, 238
def role_gemm(a):
    a("s_lshl_b32 s38, s37, 14")
    gemm_addr(a)
    a(f"s_and_b32 s35, s2, 7\ns_lshr_b32 s36, s2, 3")
    a("s_and_b32 s64, s35, 1\ns_lshl_b32 s64, s64, 2\ns_and_b32 s65, s36, 3\ns_add_u32 s64, s64, s65")
    a("s_lshr_b32 s65, s35, 1\ns_mul_i32 s65, s65, 7\ns_lshr_b32 s36, s36, 2\ns_add_u32 s65, s65, s36")
    a("s_cmp_ge_u32 s36, 7\ns_cselect_b32 s65, 28, s65")
    a("s_and_b32 s84, s64, 3\ns_lshl_b32 s84, s84, 1\ns_add_u32 s84, s84, s36\ns_and_b32 s36, s35, 1\ns_add_u32 s84, s84, s36\ns_lshl_b32 s84, s84, 1\ns_and_b32 s84, s84, 15")
    a(f"s_and_b32 s85, s{S_TB}, 3\ns_mul_i32 s85, s85, 7\ns_lshr_b32 s85, s85, 1\ns_lshl_b32 s36, s{S_HB}, 1\ns_add_u32 s85, s85, s36\ns_cmp_ge_u32 s85, 14\ns_cselect_b32 s36, 14, 0\ns_sub_u32 s85, s85, s36")
    if E("NOROT"): a("s_mov_b32 s84, 0\ns_mov_b32 s85, 0")
    srd(a, 40, P_W1, 0, 2048 * 3456)
    srd(a, 44, P_WS, HF, 64 * 40960)
    srd(a, 48, P_B1, 0, 3456)
    srd(a, 56, P_W2, 0, 1728 * 4096)
    srd(a, 52, P_WS, GF, 54 * 40960)
    gemm_dma_addr(a, 3456, True)
    a(f"s_mul_i32 s66, s37, {32*3456}\ns_lshl_b32 s36, s65, 7\ns_add_u32 s66, s66, s36")
    a(f"s_mul_i32 s67, s37, 40960\ns_mul_i32 s36, s64, 5120\ns_add_u32 s67, s67, s36")
    a(f"s_lshl_b32 s76, s37, 17\ns_lshl_b32 s36, s{S_TB}, 7\ns_add_u32 s76, s76, s36")
    a(f"s_mul_i32 s77, s37, 40960\ns_mul_i32 s36, s{S_HB}, 5120\ns_add_u32 s77, s77, s36")
    a(f"s_mul_i32 s70, s{S_HB}, 160")
    def outs(i, vrho, vc):
        a(f"v_lshrrev_b32 v14, 4, v{vrho}\nv_lshl_add_u32 v14, v14, 2, v{vrho}\nv_mul_u32_u24 v14, 1280, v14\nv_add3_u32 v{WM+i}, v14, v{vc}, s70")
        a(f"v_lshrrev_b32 v14, 4, v{vrho}\nv_bfe_u32 v15, v{vrho}, 2, 1\nv_lshl_add_u32 v14, v14, 1, v15\nv_bfe_u32 v15, v{vrho}, 3, 1\nv_lshl_add_u32 v14, v14, 1, v15")
        a(f"v_mul_u32_u24 v14, 20, v14\nv_and_b32 v15, 3, v{vrho}\nv_add3_u32 v14, v14, v15, 16\nv_mul_u32_u24 v14, 1280, v14\nv_add3_u32 v{WT+i}, v14, v{vc}, s70")
    w160_patterns(a, 11, outs)
    tr160_addr(a, WA, 11)
    a(f"v_add_u32 v{WA}, s38, v{WA}")
    a("v_lshrrev_b32 v11, 2, v0\nv_lshlrev_b32 v11, 4, v11\nv_and_b32 v12, 3, v0\nv_add_u32 v11, v11, v12\nv_lshlrev_b32 v240, 6, v11")
    a(f"s_lshr_b32 s36, s64, 2\ns_add_u32 s36, s36, 2\ns_lshl_b32 s36, s36, 14\ns_lshl_b32 s68, s37, 8\ns_add_u32 s78, s36, s68")
    a("s_and_b32 s36, s37, 1\ns_lshl_b32 s36, s36, 6\ns_lshl_b32 s68, s65, 7\ns_add_u32 s68, s68, s36\nv_lshrrev_b32 v11, 4, v0\nv_lshlrev_b32 v11, 3, v11")
    g1 = Gemm(a, "g1", 16, 40, 44, 66, 67, 80, 81, 4 * 32 * 3456, 4 * 40960, True)
    g2 = Gemm(a, "g2", 14, 56, 52, 76, 77, 82, 83, 4 * 32 * 4096, 4 * 40960, False)
    g1.start(84); g2.start(85)
    a("s_barrier\n" * 5); stamp(a, 6)
    a("s_setprio 2\ns_cmp_ge_u32 s65, 27\ns_cbranch_scc1 L_nog1")
    a.vmem("buffer_load_dwordx2 v[208:209], v11, s[48:51], s68 offen", "b1")
    a.vmem("buffer_load_dwordx2 v[210:211], v11, s[48:51], s68 offen offset:32", "b1")
    poll(a, [f"buffer_load_dword v12, v240, s[{SF}:{SF+3}], s78 offen offset:{F1+4}{SC}"], [12])
    lds_spin(a, C_KV, 4, 12, 13, sleep=1); stamp(a, 7)
    g1.pro_both()
    if not PAIR: a(f"s_setprio {E('GP', '0')}")
    def pre2():
        gemm_dma_addr(a, 4096, False)
        g2.pro_w()
    g1.run(after_last_read=pre2)
    a("s_setprio 2"); stamp(a, 8)
    a(f"s_mul_i32 s36, s37, 20480\ns_add_u32 s36, s36, {SCR}\nv_add_u32 v11, s36, v{G_ACT}")
    unpack(a, 212, 208, 4)
    for blk in range(20):
        a.ds(f"ds_write_b128 v11, {vr(G_ACC+4*blk,4)} offset:{1024*blk}")
    lds_arrive(a, C_G1A, 12, 13)
    k = 2.0 * math.sqrt(2.0 / math.pi) * math.log2(math.e)
    a(f"s_mov_b32 s70, {fbits(-k*0.044715)}\ns_mov_b32 s71, s70\nv_mov_b32 v14, {fbits(-k)}\nv_mov_b32 v15, v14")
    a(f"s_lshl_b32 s36, s37, 11\ns_add_u32 s36, s36, {SCR}\nv_add_u32 v11, s36, v{G_ACT}\nv_add_u32 v220, 40960, v11")
    a("s_lshl_b32 s69, s65, 1\ns_and_b32 s36, s37, 1\ns_add_u32 s69, s69, s36\ns_mul_i32 s69, s69, 40960")
    a("s_mul_i32 s36, s64, 5120\ns_add_u32 s69, s69, s36\ns_lshr_b32 s36, s37, 1\ns_lshl_b32 s36, s36, 10\ns_add_u32 s69, s69, s36")
    a(f"s_mul_i32 s79, s64, 27\ns_add_u32 s79, s79, s65\ns_lshl_b32 s79, s79, 2\ns_add_u32 s79, s79, s37\ns_lshl_b32 s79, s79, 6\ns_add_u32 s79, s79, {F2}")
    lds_spin(a, C_G1A, 4, 12, 13, sleep=1)
    R = 16
    def rdu(r):
        for src in range(4):
            for e in range(2):
                a.ds(f"ds_read_b128 {vr(R+32*r+8*src+4*e,4)}, v{11 if src < 2 else 220} offset:{(src&1)*20480 + 8192*r + 1024*e}", ("u", r))
    def fin(r):
        b = R + 32 * r
        for j in range(0, 8, 2):
            a(f"v_pk_add_f32 {vr(b+j,2)}, {vr(b+j,2)}, {vr(b+8+j,2)}\nv_pk_add_f32 {vr(b+16+j,2)}, {vr(b+16+j,2)}, {vr(b+24+j,2)}")
        for j in range(0, 8, 2): a(f"v_pk_add_f32 {vr(b+j,2)}, {vr(b+j,2)}, {vr(212+j,2)}")
        for j in range(0, 8, 2): a(f"v_pk_add_f32 {vr(b+j,2)}, {vr(b+j,2)}, {vr(b+16+j,2)}")
        gelu8(a, b, b + 8)
        for j in range(4): a(f"v_cvt_pk_bf16_f32 v{b+j}, v{b+2*j}, v{b+2*j+1}")
        a(f"buffer_store_dwordx4 {vr(b,4)}, v{G_ACT + (r>>1)}, s[52:55], s69 offen offset:{2048*(r&1)}{SC}")
    rdu(0); a.wait(lg="all"); rdu(1)
    fin(0)
    a.wait(lg="all")
    a(f"s_cmp_ge_u32 s37, 2\ns_cbranch_scc1 L_g1two")
    rdu(2); a.wait(lg="all"); fin(2)
    a("L_g1two:")
    lds_arrive(a, C_G1B, 12, 13)
    fin(1)
    flag(a, "s79", 12)
    a("s_branch L_g1done\nL_nog1:")
    lds_arrive(a, C_G1B, 12, 13)
    lds_spin(a, C_KV, 4, 12, 13, sleep=1)
    if not E("NOPF"):
        a("s_cmp_eq_u32 s65, 27\ns_cbranch_scc1 L_nopf")
        a("v_lshrrev_b32 v11, 2, v0\nv_lshlrev_b32 v11, 12, v11\nv_and_b32 v12, 3, v0\nv_lshl_add_u32 v11, v12, 7, v11")
        a("s_and_b32 s36, s64, 3\ns_lshl_b32 s36, s36, 2\ns_add_u32 s86, s36, s37\ns_lshl_b32 s87, s86, 16\ns_lshl_b32 s36, s35, 9\ns_add_u32 s87, s87, s36")
        for i in range(7):
            a("buffer_load_dword v12, v11, s[56:59], s87 offen\ns_add_u32 s87, s87, 0x100000\ns_waitcnt vmcnt(0)")
        srd(a, 40, P_WO, 0, 640 * 1280)
        a("v_lshlrev_b32 v11, 7, v0\ns_lshl_b32 s87, s86, 13")
        for i in range(7):
            a("buffer_load_dword v12, v11, s[40:43], s87 offen\ns_add_u32 s87, s87, 0x20000\ns_waitcnt vmcnt(0)")
        a("L_nopf:")
    pre2()
    a("L_g1done:"); stamp(a, 9)
    srd(a, 48, P_B2, 0, 4096)
    srd(a, 40, P_WO, 0, 640 * 1280)
    a(f"s_mul_i32 s36, s{S_TB}, 81920\ns_add_u32 s36, s36, {OF}")
    srd(a, 60, P_WS, "s36", 81920)
    OM, B2 = 208, 248
    a("v_bfe_u32 v11, v0, 1, 2\nv_lshlrev_b32 v11, 14, v11\nv_bfe_u32 v12, v0, 3, 1\nv_lshl_add_u32 v11, v12, 6, v11\nv_and_b32 v12, 1, v0\nv_lshl_add_u32 v241, v12, 3, v11")
    a(f"v_and_b32 v11, 15, v0\nv_lshlrev_b32 v11, 1, v11\ns_lshl_b32 s68, s{S_TB}, 9\ns_lshl_b32 s69, s{S_TB}, 7")
    for cb in range(4):
        a(f"buffer_load_ushort v{B2+cb}, v11, s[48:51], s69 offen offset:{32*cb}")
    a("s_lshr_b32 s36, s37, 1\nv_lshrrev_b32 v11, 1, v0\nv_lshl_add_u32 v11, v11, 1, s36\ns_sub_u32 s36, 26, s36\nv_min_u32 v11, s36, v11")
    a("v_and_b32 v12, 1, v0\nv_lshlrev_b32 v12, 1, v12\nv_lshl_add_u32 v11, v11, 2, v12\nv_lshlrev_b32 v240, 6, v11")
    a(f"s_mul_i32 s78, s{S_HB}, {27*256}\ns_and_b32 s36, s37, 1\ns_lshl_b32 s36, s36, 6\ns_add_u32 s78, s78, s36\ns_add_u32 s78, s78, {F2}")
    poll(a, [f"buffer_load_dwordx2 {vr(OM+2*cb,2)}, v241, s[{SF}:{SF+3}], s68 offen offset:{F1+128*cb}{SC}" for cb in range(4)], [OM + 2 * cb + 1 for cb in range(4)])
    for cb in range(4):
        a(f"v_and_b32 v{OM+2*cb}, 0xffff0000, v{OM+2*cb}\nv_lshlrev_b32 v{B2+cb}, 16, v{B2+cb}\nv_mul_f32 v{OM+2*cb+1}, v{B2+cb}, v{OM+2*cb}")
    a("s_cmp_eq_u32 s37, 0\ns_cbranch_scc1 L_keepb")
    for cb in range(4): a(f"v_mov_b32 v{OM+2*cb+1}, 0")
    a("L_keepb:")
    poll(a, [f"buffer_load_dword v12, v240, s[{SF}:{SF+3}], s78 offen{SC}"], [12]); stamp(a, 10)
    g2.pro_a()
    if not PAIR: a(f"s_setprio {E('GP', '0')}")
    a(f"s_mul_i32 s71, s37, {160*1280}")
    def wo_dma(i):
        if i < 4: a(f"s_add_u32 s70, s71, {40*1280*i}")
        for p in range(5):
            a(f"s_add_u32 m0, s38, {(i % 3)*5120 + 1024*p}\ns_nop 0")
            a.vmem(f"buffer_load_dwordx4 v{(WM if i < 4 else WT)+p}, s[40:43], {'s70' if i < 4 else 's71'} offen lds", ("wo", i))
    g2.run(after_last_read=lambda: [wo_dma(i) for i in range(3)])
    a("s_setprio 2"); stamp(a, 11)
    a(f"s_lshl_b32 s36, s37, 3\nv_add_u32 v11, s36, v0\ns_lshl_b32 s36, s{S_HB}, 2\nv_and_b32 v12, 3, v0\nv_add_u32 v12, s36, v12\nv_cmp_gt_u32 vcc, 8, v0")
    a(f"s_lshl_b32 s78, s{S_TB}, 11\ns_add_u32 s78, s78, {F3}\nv_cndmask_b32 v11, v12, v11, vcc\nv_lshlrev_b32 v240, 6, v11")
    for b in range(5):
        for cb in range(4):
            r = G_ACC + 4 * (4 * b + cb)
            for h in (0, 2):
                a(f"v_pk_fma_f32 {vr(r+h,2)}, {vr(r+h,2)}, {vr(OM+2*cb,2)}, {vr(OM+2*cb,2)} op_sel:[0,0,1] op_sel_hi:[1,0,1]")
    WOF = [176, 196, 216, 176, 196]
    def wo_rd(i):
        for b in range(5):
            r = WOF[i] + 4 * b
            a.ds(f"ds_read_b64_tr_b16 {vr(r,2)}, v{WA} offset:{(i % 3)*5120 + 32*b}", ("wo", i))
            a.ds(f"ds_read_b64_tr_b16 {vr(r+2,2)}, v{WA} offset:{(i % 3)*5120 + 32*b + 1280}", ("wo", i))
    for i in range(3):
        a.wait(vm=("wo", i)); wo_rd(i); a.wait(lg="all")
        if i < 2: wo_dma(3 + i)
    a(f"v_and_b32 v11, 15, v0\nv_mul_u32_u24 v11, 11, v11\nv_lshrrev_b32 v12, 5, v0\nv_add_u32 v11, v11, v12\nv_lshrrev_b32 v12, 4, v0\nv_lshlrev_b32 v12, 8, v12")
    a(f"s_mul_i32 s36, s37, 20480\ns_add_u32 s36, s36, {SCR}\nv_add_u32 v12, s36, v12")
    for b in range(5):
        a(f"v_add_u32 v13, {2*b}, v11\nv_and_b32 v13, 15, v13\nv_lshl_add_u32 v{G_DMA+b}, v13, 4, v12")
    final_addr(a)
    a("s_mul_i32 s70, s37, 20480"); stamp(a, 12)
    poll(a, [f"buffer_load_dword v12, v240, s[{SF}:{SF+3}], s78 offen{SC}"], [12], sleep=1); stamp(a, 13)
    for i in range(5):
        if i: a("s_add_u32 s70, s70, 4096")
        for cb in range(4):
            a.vmem(f"buffer_load_dwordx4 {vr(G_AR+16*i+4*cb,4)}, v{G_ACT}, s[60:63], s70 offen offset:{1024*cb}{SC}", ("o", i))
    for i in range(5):
        a.wait(vm=("o", i), lg=("wo", i))
        for b in range(5):
            for cb in range(4):
                acc = vr(G_ACC + 4 * (4 * b + cb), 4)
                a(f"v_mfma_f32_16x16x32_bf16 {acc}, {vr(WOF[i]+4*b,4)}, {vr(G_AR+16*i+4*cb,4)}, {acc}")
                if i == 4 and b >= 2:
                    blk = 4 * (b - 2) + cb
                    a.ds(f"ds_write_b128 v{G_DMA+b-2}, {vr(G_ACC+4*blk,4)} offset:{1024*blk}")
        if i < 2: wo_rd(3 + i)
    a("s_nop 0")
    for blk in range(12, 20):
        if blk == 16: a("s_nop 0")
        a.ds(f"ds_write_b128 v{G_DMA+(blk>>2)}, {vr(G_ACC+4*blk,4)} offset:{1024*blk}")
    stamp(a, 14)

FA = 242
def final_addr(a):
    for r in range(2):
        a(f"s_add_u32 s36, s{S_W}, {r*8}\ns_lshl_b32 s36, s36, 6\nv_add_u32 v12, s36, v0")
        a("v_mul_u32_u24 v13, 6554, v12\nv_lshrrev_b32 v13, 16, v13\nv_mul_u32_u24 v14, 10, v13\nv_sub_u32 v14, v12, v14")
        a(f"v_mul_u32_u24 v{FA+3*r}, 1280, v13\nv_lshl_add_u32 v{FA+3*r}, v14, 4, v{FA+3*r}")
        a("v_and_b32 v15, 15, v13\nv_mul_u32_u24 v15, 11, v15\nv_add_u32 v15, v15, v14\nv_and_b32 v15, 15, v15\nv_lshlrev_b32 v15, 4, v15")
        a("v_lshrrev_b32 v13, 4, v13\nv_lshl_add_u32 v15, v13, 10, v15\nv_lshrrev_b32 v13, 1, v14\nv_lshl_add_u32 v15, v13, 12, v15\nv_and_b32 v13, 1, v14\nv_lshl_add_u32 v15, v13, 9, v15")
        a(f"v_add_u32 v{FA+1+3*r}, {SCR}, v15\nv_add_u32 v{FA+2+3*r}, {SCR+40960}, v15")
def final(a):
    srd(a, 40, P_OUT, 0, 2048 * 1280)
    a(f"s_mul_i32 s64, s{S_TB}, {64*1280}\ns_mul_i32 s36, s{S_HB}, 160\ns_add_u32 s64, s64, s36")
    a("s_waitcnt lgkmcnt(0)\ns_barrier"); a.lg = []
    for r in range(2):
        if r == 1: a(f"s_cmp_ge_u32 s{S_W}, 2\ns_cbranch_scc1 L_fin")
        b = 32 + 32 * r
        for src in range(4):
            for e in range(2):
                a.ds(f"ds_read_b128 {vr(b+8*src+4*e,4)}, v{FA+1+3*r+(src>>1)} offset:{(src&1)*20480 + 256*e}")
        a.wait(lg="all")
        for j in range(0, 8, 2):
            a(f"v_pk_add_f32 {vr(b+j,2)}, {vr(b+j,2)}, {vr(b+8+j,2)}\nv_pk_add_f32 {vr(b+16+j,2)}, {vr(b+16+j,2)}, {vr(b+24+j,2)}")
        for j in range(0, 8, 2): a(f"v_pk_add_f32 {vr(b+j,2)}, {vr(b+j,2)}, {vr(b+16+j,2)}")
        for j in range(4): a(f"v_cvt_pk_bf16_f32 v{b+j}, v{b+2*j}, v{b+2*j+1}")
        a(f"buffer_store_dwordx4 {vr(b,4)}, v{FA+3*r}, s[40:43], s64 offen")
    a(f"s_or_b32 s36, s2, s{S_W}\ns_cbranch_scc1 L_fin")
    a(f"v_mov_b32 v1, {GEN}\nv_mov_b32 v2, s{S_NON}\ns_mov_b64 exec, 1\nbuffer_store_dword v2, v1, s[{SF}:{SF+3}], 0 offen\ns_mov_b64 exec, -1")

A_IDX, A_K0, A_KT, A_V, A_G = 1, 2, 3, 4, 248
A_Q, A_S, A_KV, A_O, NBUF = 8, 56, 88, 144, 4
GAPS = tuple(int(c) for c in E('GAPS', '24442'))
def kv_load(a, buf, soff):
    b = A_KV + 14 * buf
    a(f"buffer_load_dwordx4 {vr(b,4)}, v{A_K0}, s[40:43], {soff} offen{SC}")
    a(f"buffer_load_dwordx2 {vr(b+4,2)}, v{A_KT}, s[40:43], {soff} offen{SC}")
    a(f"buffer_load_dwordx4 {vr(b+6,4)}, v{A_V}, s[40:43], {soff} offen offset:{V_A}{SC}")
    a(f"buffer_load_dwordx4 {vr(b+10,4)}, v{A_V}, s[40:43], {soff} offen offset:{V_B}{SC}")
def qk(buf, t, s):
    b = A_KV + 14 * buf
    return (f"v_mfma_f32_32x32x16_bf16 {vr(s,16)}, {vr(b,4)}, {vr(A_Q+6*t,4)}, 0",
            f"v_mfma_f32_32x32x8_bf16 {vr(s,16)}, {vr(b+4,2)}, {vr(A_Q+6*t+4,2)}, {vr(s,16)}")
def pv(buf, t, s, e):
    b = A_KV + 14 * buf
    return f"v_smfmac_f32_32x32x32_bf16 {vr(A_O+12*t,16)}, {vr(b+6+4*e,4)}, {vr(s+8*e,8)}, v{A_IDX}"
def period(a, j, t, last=False, extra=None):
    cur, oth = (A_S, A_S + 16) if t % 2 == 0 else (A_S + 16, A_S)
    pb = pv(j, t - 1, oth, 1) if t > 0 else pv((j - 1) % NBUF, 7, oth, 1)
    qa, qb = qk(j, t + 1, oth) if t < 7 else qk((j + 1) % NBUF, 0, oth)
    if last and t == 7: qa = qb = None
    i = 0
    for n, m in zip(GAPS, (pb, qa, qb, pv(j, t, cur, 0), None)):
        for _ in range(n):
            a(f"v_exp_f32 v{cur+i}, v{cur+i}"); i += 1
            if extra and i in extra: a(extra[i])
        if m: a(m)

def role_att(a):
    a("s_setprio 1")
    a(f"s_mul_i32 s36, s{S_W}, {16*KT}\ns_add_u32 s36, s36, {KF}")
    srd(a, 40, P_WS, "s36", 16 * KT)
    a(f"v_lshlrev_b32 v{A_K0}, 4, v0\nv_and_b32 v6, 31, v0\nv_lshrrev_b32 v7, 5, v0")
    a(f"s_lshl_b32 s37, s{S_W}, 1\ns_xor_b32 s37, s37, 6\nv_lshlrev_b32 v5, 3, v0")
    for t in range(0, 8, 2):
        a(f"s_xor_b32 s36, s37, {t}\ns_mul_i32 s36, s36, 1280\ns_add_u32 s36, s36, {QST}\nv_add_u32 v{A_S+t}, s36, v{A_K0}\nv_add_u32 v{A_S+t+1}, s36, v5")
    for t in range(8):
        a(f"ds_read_b128 {vr(A_Q+6*t,4)}, v{A_S+(t&6)} offset:{1280*(t&1)}\nv_mov_b64 {vr(A_Q+6*t+4,2)}, 0")
    a("s_mov_b32 exec_hi, 0")
    for t in range(8):
        a(f"ds_read_b64 {vr(A_Q+6*t+4,2)}, v{A_S+(t&6)+1} offset:{1280*(t&1) + 1024}")
    a("s_mov_b32 exec_hi, -1")
    a(f"v_lshlrev_b32 v{A_KT}, 3, v0\nv_add_u32 v{A_KT}, {K_T}, v{A_KT}\nv_mov_b32 v5, 0x40000000\nv_cmp_lt_u32 vcc, 31, v0\ns_nop 1\nv_cndmask_b32 v{A_KT}, v{A_KT}, v5, vcc")
    a(f"v_lshlrev_b32 v{A_V}, 8, v7\nv_lshlrev_b32 v7, 7, v7\nv_add_u32 v7, 256, v7\nv_cmp_lt_u32 vcc, 15, v6\ns_nop 1\nv_cndmask_b32 v{A_V}, v{A_V}, v7, vcc")
    a(f"v_lshl_add_u32 v{A_V}, v6, 4, v{A_V}\nv_cmp_lt_u32 vcc, 20, v6\ns_nop 1\nv_cndmask_b32 v{A_V}, v{A_V}, v5, vcc")
    a(f"v_mov_b32 v{A_IDX}, 0xdddddddd\ns_mov_b32 s39, 0")
    a(f"s_lshr_b32 s88, s2, 4\ns_mul_i32 s88, s88, {KT}")
    if E("NOROT"): a("s_mov_b32 s88, 0")
    poll(a, att_polls(), [252, 253, A_G + 1], sleep=1, issued=True)
    stamp(a, 6)
    a("L_att_start:")
    nxt = f"s_add_u32 s64, s64, {KT}\ns_cmp_eq_u32 s64, {16*KT}\ns_cselect_b32 s64, 0, s64\ns_cmp_eq_u32 s64, s88\ns_cselect_b32 s64, {17*KT}, s64"
    a("s_mov_b32 s64, s88"); kv_load(a, 0, "s64")
    a(nxt); kv_load(a, 1, "s64")
    a(nxt); kv_load(a, 2, "s64")
    lds_arrive(a, C_KV, 6, 7)
    for r in range(A_O, A_O + 100, 2): a(f"v_mov_b64 {vr(r,2)}, 0")
    for r in range(A_S + 24, A_S + 32, 2): a(f"v_mov_b64 {vr(r,2)}, 0")
    for r in range(A_KV + 14 * 3 + 10, A_KV + 14 * 3 + 14, 2): a(f"v_mov_b64 {vr(r,2)}, 0")
    a("s_mov_b32 s65, 3\ns_waitcnt vmcnt(8) lgkmcnt(0)")
    if E("NOATT"): a("s_branch L_att_last")
    stamp(a, 7)
    for m in qk(0, 0, A_S): a(m)
    a.nop(12)
    def keytile(j, last=False):
        for t in range(8):
            extra = {}
            if t == 1 and not last:
                x = Asm(); kv_load(x, (j - 1) % NBUF, "s64")
                extra = {3: x.l[0], 6: x.l[1], 9: x.l[2], 12: x.l[3]}
            if t == 0 and not last:
                y = nxt.split("\n")
                extra = {3: y[0], 5: y[1], 7: y[2], 9: y[3], 11: y[4]}
            if t == 7 and not last:
                extra = {3: "s_waitcnt vmcnt(8)"}
            if last and t >= 2:
                o = A_O + 12 * (t - 2)
                extra = {3 + 3 * i: f"ds_write_b128 v6, {vr(o+4*i,4)} offset:{3072*(t-2) + 1024*i}" for i in range(3)}
            period(a, j, t, last, extra)
    a(".p2align 3")
    a("L_att_loop:")
    for j in range(3): keytile(j)
    a("s_cmp_eq_u32 s65, 0\ns_cbranch_scc1 L_att_last")
    keytile(3)
    a("s_sub_u32 s65, s65, 1\ns_branch L_att_loop")
    a("L_att_last:"); stamp(a, 8)
    lds_spin(a, C_G1B, 4, 6, 7, sleep=(8 if E("NOATT") else 0))
    a(f"s_mul_i32 s36, s{S_W}, 18432\ns_add_u32 s36, s36, {SCR}\nv_add_u32 v6, s36, v{A_K0}")
    keytile(3, True)
    a.nop(2)
    a(pv(3, 7, A_S + 16, 1))
    a("s_setprio 3")
    stamp(a, 9)
    lds_arrive(a, C_ATT, 6, 7)
    for j in (1, 2, 3):
        a(f"s_xor_b32 s36, s{S_W}, {j}\ns_mul_i32 s36, s36, 18432\ns_add_u32 s36, s36, {SCR + 3072*(6 ^ (2*j))}\nv_add_u32 v{A_S+j}, s36, v{A_K0}")
    a(f"s_mul_i32 s66, s39, 12\ns_add_u32 s66, s66, 4\ns_waitcnt vmcnt(0)")
    lds_spin(a, C_ATT, "s66", 6, 7)
    stamp(a, 10)
    P = A_KV
    for j in (1, 2, 3):
        for i in range(6):
            a.ds(f"ds_read_b128 {vr(P+24*(j-1)+4*i,4)}, v{A_S+j} offset:{1024*i}", ("p", j))
    T = A_S + 4
    a(f"s_mul_i32 s36, s{S_TB}, 81920\ns_add_u32 s36, s36, {OF}")
    srd(a, 52, P_WS, "s36", 81920)
    a(f"v_and_b32 v{T+6}, 15, v0\nv_lshlrev_b32 v{T+6}, 4, v{T+6}\nv_bfe_u32 v{T+7}, v0, 4, 1\nv_lshl_add_u32 v{T+6}, v{T+7}, 10, v{T+6}")
    a(f"v_lshrrev_b32 v{T+7}, 5, v0\nv_lshl_add_u32 v{T+7}, v{T+7}, 8, v{T+6}\nv_lshlrev_b32 v{T+8}, 16, v{A_G}")
    a(f"s_lshr_b32 s66, s{S_HB}, 1\ns_mul_i32 s66, s66, 20480\ns_lshr_b32 s36, s{S_W}, 1\ns_lshl_b32 s36, s36, 11\ns_add_u32 s66, s66, s36")
    a(f"s_and_b32 s36, s{S_HB}, 1\ns_lshl_b32 s36, s36, 1\ns_and_b32 s67, s{S_W}, 1\ns_add_u32 s36, s36, s67")
    a("s_lshl_b32 s67, s36, 12\ns_add_u32 s67, s67, s66\ns_lshl_b32 s36, s36, 8\ns_add_u32 s66, s66, s36\ns_add_u32 s66, s66, 16384")
    a(f"s_lshl_b32 s77, s{S_TB}, 3\ns_add_u32 s77, s77, s{S_HB}\ns_lshl_b32 s77, s77, 2\ns_add_u32 s77, s77, s{S_W}\ns_lshl_b32 s77, s77, 6\ns_add_u32 s77, s77, {F3}")
    O = A_O + 72
    for j in (1, 2, 3):
        a.wait(lg=("p", j))
        for i in range(0, 24, 2):
            a(f"v_pk_add_f32 {vr(O+i,2)}, {vr(O+i,2)}, {vr(P+24*(j-1)+i,2)}")
    a(f"v_mov_b32 v{T}, v{O+8}\nv_mov_b32 v{T+2}, v{O+8}\nv_mov_b32 v{T+1}, v{O+20}\nv_mov_b32 v{T+4}, v{O+20}\ns_nop 0")
    a(f"v_permlane32_swap_b32 v{T}, v{T+2}\nv_permlane32_swap_b32 v{T+1}, v{T+4}")
    a("s_cmp_lg_u32 s39, 0\ns_cbranch_scc1 L_att_ok")
    a(f"s_mov_b32 s68, {fbits(2.0**-80)}\ns_mov_b32 s69, {fbits(2.0**80)}")
    a(f"v_cmp_nle_f32 s[80:81], s68, v{T+2}\nv_cmp_nge_f32 s[82:83], s69, v{T+2}\nv_cmp_nle_f32 s[84:85], s68, v{T+4}\nv_cmp_nge_f32 s[86:87], s69, v{T+4}")
    a("s_nop 1\ns_or_b64 s[80:81], s[80:81], s[82:83]\ns_or_b64 s[84:85], s[84:85], s[86:87]\ns_or_b64 s[80:81], s[80:81], s[84:85]")
    a(f"s_cselect_b32 s36, 0x101, 1\nv_mov_b32 v6, {C_BAD}\nv_mov_b32 v7, s36\ns_mov_b64 exec, 1\nds_add_u32 v6, v7\ns_mov_b64 exec, -1")
    a("L_att_ok:")
    a(f"v_rcp_f32 v{T+2}, v{T+2}\nv_rcp_f32 v{T+4}, v{T+4}\ns_nop 0\nv_mul_f32 v{T+2}, v{T+2}, v{T+8}\nv_mul_f32 v{T+4}, v{T+4}, v{T+8}")
    for e in range(2):
        for i in range(0, 12, 2):
            a(f"v_pk_mul_f32 {vr(O+12*e+i,2)}, {vr(O+12*e+i,2)}, {vr(T+2+2*e,2)} op_sel_hi:[1,0]")
    for e in range(2):
        for i in range(4): a(f"v_cvt_pk_bf16_f32 v{P+4*e+i}, v{O+12*e+2*i}, v{O+12*e+2*i+1}")
        for i in range(2): a(f"v_cvt_pk_bf16_f32 v{P+8+2*e+i}, v{O+12*e+8+2*i}, v{O+12*e+9+2*i}")
    a(f"buffer_store_dwordx4 {vr(P,4)}, v{T+7}, s[52:55], s67 offen{SC}")
    a(f"buffer_store_dwordx4 {vr(P+4,4)}, v{T+7}, s[52:55], s67 offen offset:512{SC}")
    a(f"s_mov_b32 exec_hi, 0\nbuffer_store_dwordx4 {vr(P+8,4)}, v{T+6}, s[52:55], s66 offen{SC}\ns_mov_b64 exec, -1")
    stamp(a, 11)
    a("s_cmp_lg_u32 s39, 0\ns_cbranch_scc1 L_att_redo_done")
    lds_spin(a, C_BAD, 4, 6, 7, mask=0xff)
    a("s_lshr_b32 s94, s94, 8\ns_cbranch_scc0 L_att_done")
    M = A_O
    a("s_waitcnt vmcnt(0)")
    for t in range(8): a(f"v_mov_b32 v{M+t}, 0xff800000")
    a("s_mov_b32 s64, 0\ns_mov_b32 s39, 1")
    a("L_slow_loop:")
    kv_load(a, 0, "s64")
    a("s_waitcnt vmcnt(0)")
    for t in range(8):
        for m in qk(0, t, A_S): a(m)
        a.nop(16)
        for i in range(0, 16, 2): a(f"v_max3_f32 v{M+t}, v{M+t}, v{A_S+i}, v{A_S+i+1}")
    a(f"s_add_u32 s64, s64, {KT}\ns_cmp_lt_u32 s64, {16*KT}\ns_cbranch_scc1 L_slow_loop")
    a(f"v_lshlrev_b32 v{A_S}, 2, v0\ns_lshl_b32 s36, s{S_W}, 11\ns_add_u32 s36, s36, {SCR}\nv_add_u32 v{A_S}, s36, v{A_S}")
    for t in range(8):
        a(f"s_xor_b32 s36, s37, {t}\ns_lshl_b32 s36, s36, 8\nv_add_u32 v{A_S+1}, s36, v{A_S}\nds_write_b32 v{A_S+1}, v{M+t}")
    lds_arrive(a, C_ATT, 6, 7)
    lds_spin(a, C_ATT, 8, 6, 7)
    a(f"v_and_b32 v{A_S}, 31, v0\nv_lshlrev_b32 v{A_S}, 2, v{A_S}\nv_add_u32 v{A_S}, {SCR}, v{A_S}")
    for t in range(8):
        a(f"s_xor_b32 s36, s37, {t}\ns_lshl_b32 s36, s36, 8\nv_add_u32 v{A_S+1}, s36, v{A_S}")
        for w in range(4):
            a(f"ds_read2_b32 {vr(A_S+2+2*w,2)}, v{A_S+1} offset0:0 offset1:32\nv_add_u32 v{A_S+1}, 2048, v{A_S+1}")
        a("s_waitcnt lgkmcnt(0)")
        for i in range(0, 8, 2): a(f"v_max3_f32 v{M+t}, v{M+t}, v{A_S+2+i}, v{A_S+3+i}")
        m, h1, h2 = M + t, A_S + 2, A_S + 3
        a(f"v_sub_f32 v{m}, 0, v{m}\nv_and_b32 v{h1}, 0xffff0000, v{m}\nv_sub_f32 v{m}, v{m}, v{h1}\nv_and_b32 v{h2}, 0xffff0000, v{m}\nv_sub_f32 v{m}, v{m}, v{h2}")
        a(f"v_lshrrev_b32 v{h1}, 16, v{h1}\nv_or_b32 v{h1}, v{h1}, v{h2}\nv_lshrrev_b32 v{m}, 16, v{m}")
        a(f"s_mov_b32 exec_lo, 0\nv_mov_b32 v{A_Q+6*t+4}, v{h1}\nv_mov_b32 v{A_Q+6*t+5}, v{m}\ns_mov_b32 exec_lo, -1")
    a(f"s_mov_b32 exec_lo, 0\nv_mov_b32 v{A_KT}, {K_C}\ns_mov_b32 exec_lo, -1")
    lds_arrive(a, C_ATT, 6, 7)
    lds_spin(a, C_ATT, 12, 6, 7)
    a("s_setprio 1\ns_branch L_att_start")
    a("L_att_redo_done:")
    lds_arrive(a, C_ATT, 6, 7)
    lds_spin(a, C_ATT, 20, 6, 7)
    a("L_att_done:")
    flag(a, "s77", 6)
    stamp(a, 12)
    final_addr(a)

def kernel():
    a = Asm()
    a(f".p2align 8\n.type {L},@function\n{L}:")
    a("s_cmp_ge_u32 s2, 256\ns_cbranch_scc1 L_end")
    if STAMP:
        a("v_mov_b32 v254, 0\nv_mov_b32 v255, 0"); stamp(a, 0)
    a("s_load_dwordx16 s[4:19], s[0:1], 0\ns_load_dwordx8 s[20:27], s[0:1], 64\ns_load_dwordx4 s[28:31], s[0:1], 96")
    a(f"v_lshrrev_b32 v1, 6, v0\nv_and_b32 v0, 63, v0\nv_readfirstlane_b32 s{S_W}, v1")
    a(f"s_and_b32 s35, s2, 7\ns_lshl_b32 s{S_TB}, s35, 2\ns_bfe_u32 s36, s2, 0x20003\ns_add_u32 s{S_TB}, s{S_TB}, s36\ns_lshr_b32 s{S_HB}, s2, 5")
    a(f"v_lshlrev_b32 v1, 2, v0\nv_add_u32 v1, {CNT}, v1\nv_mov_b32 v2, 0\nds_write_b32 v1, v2")
    a(f"s_sub_u32 s37, s{S_W}, 4\ns_waitcnt lgkmcnt(0)\ns_barrier")
    srd(a, SF, P_WS, FL, FLSZ)
    a(f"s_cmp_lt_u32 s{S_W}, 4\ns_cbranch_scc1 L_q")
    role_rows(a)
    role_gemm(a)
    a("s_branch L_final")
    a("L_q:")
    role_q(a)
    role_att(a)
    a("L_final:")
    final(a)
    a("L_fin:"); endpgm(a)
    a("L_end:\ns_endpgm")
    return a

def build(path):
    a = kernel()
    out = open("cdna_kernels/" + NAME + ".s.ref").read().split("; Override launch")[0]
    out += f"; @launch grid=(256,1,1) block=(512,1,1) lds={LDS_BYTES}\n"
    out += f'.amdgcn_target "amdgcn-amd-amdhsa--gfx950"\n.text\n.globl {L}\n' + a.text()
    out += f""".section .rodata,"a"
.p2align 6
.amdhsa_kernel {L}
  .amdhsa_next_free_vgpr 256
  .amdhsa_next_free_sgpr 102
  .amdhsa_accum_offset 256
  .amdhsa_group_segment_fixed_size 0
  .amdhsa_kernarg_size 112
  .amdhsa_user_sgpr_count 2
  .amdhsa_user_sgpr_kernarg_segment_ptr 1
  .amdhsa_system_sgpr_workgroup_id_x 1
.end_amdhsa_kernel
"""
    bad = lint(a.l, "k")
    for m in bad: print(m)
    open(path, "w").write(out)
    print("written", path, "lint issues:", len(bad), "lines", len(a.l))

if __name__ == "__main__":
    STAMP = len(sys.argv) > 2
    build(sys.argv[1] if len(sys.argv) > 1 else "cdna_kernels/" + NAME + ".s")
```

```python
import sys, math, os, struct
from asmlib import *

NAME = "gated_mix__grouped_kv_mqa__mixer_token_mlp__prompt"
L = NAME + "_kernel"
E = os.environ.get
HF, KF, OF, GF, FL = 0, 0x280000, 0x2B0000, 0x530000, 0x750000
F1, F2, F3, GEN, FLSZ = 0, 0x10000, 0x20000, 0x30000, 0x30100
KT = 2816
K_T, V_A, V_B, K_C = 1024, 1280, 2048, 1856
WQ, XA, WKV, HROW, CNT = 0, 40960, 122880, 148480, 159232
QST = HROW
RING, SCR = 0, 65536
LDS_BYTES = CNT + 256
C_R, C_G1A, C_G1B, C_ATT, C_BAD, C_NON, C_X, C_KV = [CNT + 4 * i for i in range(8)]
P_X, P_WQ, P_WK, P_WV, P_WO, P_W1, P_B1, P_W2, P_B2, P_GW, P_OUT, P_DBG, P_WS = 4, 6, 8, 10, 12, 16, 18, 20, 22, 24, 26, 28, 30
S_W, S_TB, S_HB, S_NON = 32, 33, 34, 3
SF = 72
QSCALE = math.log2(math.e) / math.sqrt(20.0)
SC = " sc1"
def fbits(x):
    return "0x%08x" % struct.unpack("<I", struct.pack("<f", x))[0]

def srd(a, d, ptr, off, nbytes):
    if off == 0:
        a(f"s_mov_b32 s{d}, s{ptr}\ns_mov_b32 s{d+1}, s{ptr+1}")
    else:
        a(f"s_add_u32 s{d}, s{ptr}, {off}\ns_addc_u32 s{d+1}, s{ptr+1}, 0")
    a(f"s_mov_b32 s{d+2}, {nbytes}\ns_mov_b32 s{d+3}, 0x20000")

STAMP = False
ST = 0xA00000
def stamp(a, i):
    if not STAMP: return
    a(f"s_memrealtime s[96:97]\ns_memtime s[98:99]\ns_waitcnt lgkmcnt(0)\nv_writelane_b32 v254, s96, {i}\nv_writelane_b32 v255, s98, {i}"); a.lg = []
def hold(a, name):
    if E("HOLD") != name: return
    u = uid()
    a(f"L_hold{u}:\ns_memrealtime s[96:97]\ns_waitcnt lgkmcnt(0)\ns_sub_u32 s96, s96, s100\ns_cmp_lt_u32 s96, {E('HOLD_T')}\ns_cbranch_scc1 L_hold{u}"); a.lg = []
def endpgm(a):
    hold(a, "end")
    if STAMP:
        a("s_waitcnt vmcnt(0)"); stamp(a, 15)
        a(f"s_mov_b64 exec, 0xffff\ns_lshl_b32 s98, s2, 3\ns_add_u32 s98, s98, s{S_W}\ns_lshl_b32 s98, s98, 7\ns_add_u32 s98, s98, {ST}\nv_lshl_add_u32 v1, v0, 3, s98")
        a(f"global_store_dwordx2 v1, v[254:255], s[{P_WS}:{P_WS+1}]")
    a("s_endpgm")

_uid = [0]
def uid():
    _uid[0] += 1; return _uid[0]
def lds_arrive(a, cnt, va, vt):
    a(f"v_mov_b32 v{va}, {cnt}\nv_mov_b32 v{vt}, 1\ns_waitcnt lgkmcnt(0)\ns_mov_b64 exec, 1\nds_add_u32 v{va}, v{vt}\ns_mov_b64 exec, -1")
    a.lg = []
def lds_spin(a, cnt, target, va, vt, sleep=0, mask=None):
    u = uid()
    a(f"v_mov_b32 v{va}, {cnt}\ns_mov_b32 s95, 0x40000")
    a(f"L_spin{u}:\nds_read_b32 v{vt}, v{va}\ns_waitcnt lgkmcnt(0)\nv_readfirstlane_b32 s94, v{vt}\ns_nop 0")
    if mask: a(f"s_and_b32 s93, s94, {mask}\ns_cmp_ge_u32 s93, {target}")
    else: a(f"s_cmp_ge_u32 s94, {target}")
    a(f"s_cbranch_scc1 L_spun{u}")
    if sleep: a(f"s_sleep {sleep}")
    a(f"s_sub_u32 s95, s95, 1\ns_cbranch_scc0 L_spin{u}\nL_spun{u}:")
    a.lg = []
def poll(a, loads, checks, sleep=2, issued=False):
    u = uid()
    a("s_mov_b32 s95, 0x8000")
    if issued: a(f"s_branch L_pollw{u}")
    a(f"L_poll{u}:")
    for x in loads: a(x)
    a(f"L_pollw{u}:\ns_waitcnt vmcnt(0)")
    a(f"v_cmp_ne_u32 vcc, s{S_NON}, v{checks[0]}")
    for c in checks[1:]:
        a(f"v_cmp_ne_u32 s[92:93], s{S_NON}, v{c}\ns_nop 0\ns_or_b64 vcc, vcc, s[92:93]")
    a(f"s_nop 0\ns_cmp_eq_u64 vcc, 0\ns_cbranch_scc1 L_polled{u}\ns_sleep {sleep}\ns_sub_u32 s95, s95, 1\ns_cbranch_scc0 L_poll{u}\nL_polled{u}:")
    a.vm = []
def flag(a, soff, vt):
    a(f"v_mov_b32 v{vt}, 0\nv_mov_b32 v{vt+1}, s{S_NON}\ns_waitcnt vmcnt(0)\ns_mov_b64 exec, 1")
    a(f"buffer_store_dword v{vt+1}, v{vt}, s[{SF}:{SF+3}], {soff} offen{SC}\ns_mov_b64 exec, -1")
    a.vm = [None]

def half_sum(a, r, t):
    for st in ("quad_perm:[1,0,3,2]", "quad_perm:[2,3,0,1]", "row_half_mirror", "row_mirror"):
        a(f"s_nop 1\nv_add_f32_dpp v{r}, v{r}, v{r} {st} row_mask:0xf bank_mask:0xf")
    a(f"v_mov_b32 v{t}, v{r}\ns_nop 1\nv_permlane16_swap_b32 v{r}, v{t}\nv_add_f32 v{r}, v{r}, v{t}")

def w160_patterns(a, vt, outs):
    for i in range(5):
        a(f"v_add_u32 v{vt}, {64*i}, v0")
        a(f"v_mul_u32_u24 v{vt+1}, 205, v{vt}\nv_lshrrev_b32 v{vt+1}, 11, v{vt+1}")
        a(f"v_mul_u32_u24 v{vt+2}, 10, v{vt+1}\nv_sub_u32 v{vt+2}, v{vt}, v{vt+2}\nv_lshlrev_b32 v{vt+2}, 4, v{vt+2}")
        outs(i, vt + 1, vt + 2)
def tr160_addr(a, vd, vt):
    a(f"v_lshrrev_b32 v{vt}, 5, v0\nv_lshlrev_b32 v{vt}, 4, v{vt}")
    a(f"v_bfe_u32 v{vd}, v0, 2, 3\nv_add_u32 v{vt}, v{vt}, v{vd}")
    a(f"v_mul_u32_u24 v{vt}, 160, v{vt}\nv_and_b32 v{vd}, 3, v0\nv_lshl_add_u32 v{vd}, v{vd}, 3, v{vt}")
def xfrag_addr(a, vd, vt, base):
    a(f"v_and_b32 v{vt}, 15, v0\nv_lshrrev_b32 v{vt+1}, 4, v0\nv_xor_b32 v{vt+1}, v{vt+1}, v{vt}")
    a(f"v_lshrrev_b32 v{vt+2}, 2, v{vt}\nv_mul_u32_u24 v{vt+2}, 5120, v{vt+2}\nv_and_b32 v{vt}, 3, v{vt}\nv_lshl_add_u32 v{vt+2}, v{vt}, 8, v{vt+2}\nv_add_u32 v{vt+2}, {base}, v{vt+2}")
    for k in range(4):
        a(f"v_xor_b32 v{vt}, {4*k}, v{vt+1}\nv_lshl_add_u32 v{vd+k}, v{vt}, 4, v{vt+2}")
XF = 64
def unpack(a, dst, src, n):
    for j in range(n):
        a(f"v_lshlrev_b32 v{dst+2*j}, 16, v{src+j}\nv_and_b32 v{dst+2*j+1}, 0xffff0000, v{src+j}")
def rnd(a, r):
    a(f"v_cvt_pk_bf16_f32 v{r}, v{r}, v{r}\nv_lshlrev_b32 v{r}, 16, v{r}")

def role_rows(a):
    a("s_setprio 3")
    a(f"s_load_dword s{S_NON}, s[{SF}:{SF+1}], {GEN}")
    srd(a, 40, P_X, 0, 2048 * 1280)
    a(f"s_lshl_b32 s35, s{S_TB}, 6\ns_lshl_b32 s36, s{S_HB}, 3\ns_add_u32 s36, s36, s35\ns_lshl_b32 s38, s37, 1\ns_add_u32 s36, s36, s38\ns_mul_i32 s39, s36, 1280")
    a("v_and_b32 v52, 31, v0\nv_lshlrev_b32 v52, 3, v52\nv_lshrrev_b32 v53, 5, v0\nv_mul_u32_u24 v1, 1280, v53\nv_add_u32 v1, v1, v52")
    for j in range(5):
        a(f"buffer_load_dwordx2 {vr(2+2*j,2)}, v1, s[40:43], s39 offen offset:{256*j}")
    a(f"s_lshr_b32 s36, s{S_HB}, 1\ns_lshl_b32 s36, s36, 4\ns_add_u32 s64, s35, s36")
    a("s_lshl_b32 s38, s37, 2\nv_lshrrev_b32 v54, 4, v0\nv_add_u32 v54, s38, v54\nv_and_b32 v55, 15, v0\nv_xor_b32 v55, v55, v54\nv_mul_u32_u24 v54, 1280, v54\nv_lshl_add_u32 v54, v55, 4, v54")
    a(f"s_mul_i32 s36, s64, 1280\ns_mul_i32 s38, s37, 5120")
    for j in range(5):
        a(f"s_add_u32 m0, s38, {XA + 3*20480 + 768*j}\ns_nop 0")
        a(f"buffer_load_dwordx4 v54, s[40:43], s36 offen offset:{256*j} lds")
    a(f"s_and_b32 s36, s{S_HB}, 1\ns_cmp_eq_u32 s36, 0\ns_cselect_b32 s48, s{P_WK}, s{P_WV}\ns_cselect_b32 s49, s{P_WK+1}, s{P_WV+1}")
    a("s_mov_b32 s50, 25600\ns_mov_b32 s51, 0x20000\nv_lshlrev_b32 v55, 4, v0\ns_mul_i32 s36, s37, 6144")
    for h in range(2):
        a(f"s_add_u32 m0, s36, {WKV}\ns_nop 0")
        for i in range(3):
            a(f"buffer_load_dwordx4 v55, s[48:51], s36 offen offset:{1024*i} lds")
        if h == 0: a("s_add_u32 s36, s36, 3072")
    a(f"s_cmp_lg_u32 s37, 3\ns_cbranch_scc1 L_r1\nbuffer_load_dwordx4 v55, s[48:51], s36 offen offset:3072 lds\nL_r1:")
    srd(a, 44, P_GW, 0, 1280)
    a("s_waitcnt vmcnt(11)"); stamp(a, 1)
    X, T = 12, 32
    unpack(a, X, 2, 10)
    a(f"v_pk_add_f32 v[56:57], {vr(X,2)}, {vr(X+2,2)}\nv_pk_add_f32 v[58:59], {vr(X+4,2)}, {vr(X+6,2)}")
    for j in range(4, 10, 2):
        a(f"v_pk_add_f32 v[56:57], v[56:57], {vr(X+2*j,2)}\nv_pk_add_f32 v[58:59], v[58:59], {vr(X+2*j+2,2)}")
    a("v_pk_add_f32 v[56:57], v[56:57], v[58:59]\nv_add_f32 v56, v56, v57")
    half_sum(a, 56, 57)
    a(f"v_mul_f32 v56, {fbits(1.0/640)}, v56")
    for j in range(10):
        a(f"v_pk_add_f32 {vr(T+2*j,2)}, {vr(X+2*j,2)}, v[56:57] op_sel_hi:[1,0] neg_lo:[0,1] neg_hi:[0,1]")
    a(f"v_pk_mul_f32 v[58:59], {vr(T,2)}, {vr(T,2)}\nv_pk_mul_f32 v[60:61], {vr(T+2,2)}, {vr(T+2,2)}")
    for j in range(2, 10, 2):
        a(f"v_pk_fma_f32 v[58:59], {vr(T+2*j,2)}, {vr(T+2*j,2)}, v[58:59]\nv_pk_fma_f32 v[60:61], {vr(T+2*j+2,2)}, {vr(T+2*j+2,2)}, v[60:61]")
    a("v_pk_add_f32 v[58:59], v[58:59], v[60:61]\nv_add_f32 v58, v58, v59")
    rnd(a, 56)
    x = Asm(); half_sum(x, 58, 59)
    y = Asm()
    for j in range(10):
        y(f"v_pk_add_f32 {vr(T+2*j,2)}, {vr(X+2*j,2)}, v[56:57] op_sel_hi:[1,0] neg_lo:[0,1] neg_hi:[0,1]")
    for ln in x.l:
        if ln == "s_nop 1": a(y.l.pop(0)); a(y.l.pop(0))
        else: a(ln)
    a(f"v_mul_f32 v58, {fbits(1.0/640)}, v58"); rnd(a, 58)
    a(f"v_add_f32 v58, {fbits(1e-5)}, v58"); rnd(a, 58)
    a("v_sqrt_f32 v58, v58")
    for j in range(10):
        a(f"v_cvt_pk_bf16_f32 v{2+j}, v{T+2*j}, v{T+2*j+1}")
    rnd(a, 58)
    a("v_rcp_f32 v58, v58")
    unpack(a, T, 2, 10)
    for j in range(10):
        a(f"v_pk_mul_f32 {vr(T+2*j,2)}, {vr(T+2*j,2)}, v[58:59] op_sel_hi:[1,0]")
    for j in range(10):
        a(f"v_cvt_pk_bf16_f32 v{2+j}, v{T+2*j}, v{T+2*j+1}")
    a(f"s_mul_i32 s36, s37, 2688\ns_add_u32 s36, s36, {HROW}\nv_mul_u32_u24 v56, 1344, v53\nv_add3_u32 v56, v56, v52, s36")
    for j in range(5):
        a(f"ds_write_b64 v56, {vr(2+2*j,2)} offset:{256*j}")
    stamp(a, 2)
    a("s_waitcnt vmcnt(0)")
    lds_arrive(a, C_R, 56, 57)
    a(f"s_mul_i32 s{S_NON}, s{S_NON}, 1664525\ns_add_u32 s{S_NON}, s{S_NON}, 1013904223")
    GR = 168
    for j in range(5):
        a(f"buffer_load_dwordx2 {vr(GR+2*j,2)}, v52, s[44:47], 0 offen offset:{256*j}")
    a(f"v_mov_b32 v56, {C_NON}\nv_mov_b32 v57, s{S_NON}\nds_write_b32 v56, v57")
    a(f"s_cmp_lt_u32 s37, 2\ns_cbranch_scc1 L_kv")
    srd(a, 52, P_WS, HF, 64 * 40960)
    a(f"v_bfe_u32 v2, v0, 2, 2\nv_mul_u32_u24 v2, 1344, v2\nv_lshrrev_b32 v3, 4, v0\nv_lshl_add_u32 v2, v3, 5, v2\nv_and_b32 v4, 3, v0\nv_lshl_add_u32 v2, v4, 3, v2")
    a(f"s_sub_u32 s36, s37, 2\ns_mul_i32 s65, s36, 640\ns_add_u32 s65, s65, {HROW}\nv_add_u32 v2, s65, v2")
    a("v_and_b32 v4, 15, v0\nv_lshlrev_b32 v4, 4, v4\nv_lshl_add_u32 v4, v3, 10, v4")
    a(f"s_lshr_b32 s66, s64, 5\ns_mul_i32 s66, s66, 40960\ns_and_b32 s65, s{S_HB}, 3\ns_lshl_b32 s65, s65, 8\ns_add_u32 s66, s66, s65")
    a(f"s_mul_i32 s36, s36, 20480\ns_add_u32 s66, s66, s36")
    lds_spin(a, C_R, 4, 56, 57); stamp(a, 3)
    for u in range(5):
        a(f"ds_read_b64_tr_b16 {vr(64+4*u,2)}, v2 offset:{128*u}\nds_read_b64_tr_b16 {vr(66+4*u,2)}, v2 offset:{128*u + 4*1344}")
    for u in range(5):
        a(f"s_waitcnt lgkmcnt({8-2*u})")
        a(f"buffer_store_dwordx4 {vr(64+4*u,4)}, v4, s[52:55], s66 offen{SC}")
        if u < 4: a("s_add_u32 s66, s66, 4096")
    a("s_waitcnt vmcnt(5)\ns_branch L_gate")
    a("L_kv:")
    srd(a, 52, P_WS, KF, 64 * KT)
    a("v_lshrrev_b32 v3, 4, v0\nv_lshlrev_b32 v2, 3, v3\nv_bfe_u32 v4, v0, 2, 2\nv_add_u32 v2, v2, v4\nv_mul_u32_u24 v2, 40, v2")
    a(f"v_and_b32 v4, 3, v0\nv_lshlrev_b32 v4, 3, v4\nv_mov_b32 v5, 32\ns_cmp_eq_u32 s37, 1\ns_cselect_b64 vcc, -1, 0\nv_cndmask_b32 v4, v4, v5, vcc")
    a(f"v_add_u32 v2, v2, v4\nv_add_u32 v2, {WKV}, v2\nv_and_b32 v6, 15, v0")
    xfrag_addr(a, 60, 56, XA + 3 * 20480)
    a(f"s_lshr_b32 s65, s64, 5\ns_mul_i32 s65, s65, {KT}\ns_bfe_u32 s66, s64, 0x10004")
    lds_spin(a, C_R, 4, 56, 57); stamp(a, 3)
    WF, AC = 144, 32
    def kvchain(isv):
        def rd(ks):
            b = WF + 4 * (ks % 6)
            a(f"ds_read_b128 {vr(XF+4*ks,4)}, v{60+(ks&3)} offset:{1024*(ks>>2)}")
            a(f"ds_read_b64_tr_b16 {vr(b,2)}, v2 offset:{1280*ks}\nds_read_b64_tr_b16 {vr(b+2,2)}, v2 offset:{1280*ks+160}")
        for ks in range(4): rd(ks)
        for ks in range(20):
            if ks + 4 < 20: rd(ks + 4)
            a(f"s_waitcnt lgkmcnt({3*(min(19, ks+4) - ks)})")
            w = vr(WF + 4 * (ks % 6), 4); x = vr(XF + 4 * ks, 4)
            acc = AC + 4 * (ks & 1)
            a(f"v_mfma_f32_16x16x32_bf16 {vr(acc,4)}, {x if isv else w}, {w if isv else x}, {'0' if ks < 2 else vr(acc,4)}")
    def kvfin():
        a(f"v_pk_add_f32 {vr(AC,2)}, {vr(AC,2)}, {vr(AC+4,2)}\nv_pk_add_f32 {vr(AC+2,2)}, {vr(AC+2,2)}, {vr(AC+6,2)}")
        a(f"v_cvt_pk_bf16_f32 v8, v{AC}, v{AC+1}\nv_cvt_pk_bf16_f32 v9, v{AC+2}, v{AC+3}")
    a(f"s_and_b32 s36, s{S_HB}, 1\ns_cbranch_scc1 L_v")
    kvchain(False)
    a("s_lshl_b32 s66, s66, 4\nv_add_u32 v6, s66, v6")
    a("v_lshrrev_b32 v4, 1, v3\nv_lshlrev_b32 v4, 9, v4\nv_lshl_add_u32 v4, v6, 4, v4\nv_and_b32 v5, 1, v3\nv_lshl_add_u32 v4, v5, 3, v4\ns_nop 0")
    kvfin()
    a(f"s_cmp_eq_u32 s37, 0\ns_cbranch_scc1 L_kvst\nv_lshlrev_b32 v4, 3, v6\nv_add_u32 v4, {K_T}, v4\ns_mov_b64 exec, 0xffff\ns_branch L_kvst")
    a("L_v:")
    kvchain(True)
    a(f"s_mul_i32 s66, s66, 768\ns_add_u32 s65, s65, s66\ns_add_u32 s65, s65, {V_A}\ns_lshl_b32 s36, s37, 9\ns_add_u32 s65, s65, s36\ns_sub_u32 s36, 8, s37")
    a("v_lshrrev_b32 v4, 1, v3\nv_lshlrev_b32 v4, s36, v4\nv_lshl_add_u32 v4, v6, 4, v4\nv_and_b32 v5, 1, v3\nv_lshl_add_u32 v4, v5, 3, v4")
    kvfin()
    a("s_cmp_eq_u32 s37, 0\ns_cbranch_scc1 L_kvst")
    a("s_mov_b32 exec_lo, 0x00100010\ns_mov_b32 exec_hi, 0x00100010\nv_mov_b32 v8, 0x3f803f80\nv_mov_b32 v9, 0x3f803f80")
    a("s_mov_b32 exec_lo, 0x001f001f\ns_mov_b32 exec_hi, 0x001f001f")
    a(f"L_kvst:\nbuffer_store_dwordx2 v[8:9], v4, s[52:55], s65 offen{SC}\ns_mov_b64 exec, -1\ns_waitcnt vmcnt(1)")
    a("L_gate:"); stamp(a, 4)
    unpack(a, T, GR, 10)
    for j in range(10): a(f"v_pk_mul_f32 {vr(T+2*j,2)}, {vr(T+2*j,2)}, {vr(X+2*j,2)}")
    for j in range(10): a(f"v_cvt_pk_bf16_f32 v{GR+j}, v{T+2*j}, v{T+2*j+1}")
    unpack(a, T, GR, 10)
    for j in range(2, 10, 2):
        a(f"v_pk_add_f32 {vr(T,2)}, {vr(T,2)}, {vr(T+2*j,2)}\nv_pk_add_f32 {vr(T+2,2)}, {vr(T+2,2)}, {vr(T+2*j+2,2)}")
    a(f"v_pk_add_f32 v[56:57], {vr(T,2)}, {vr(T+2,2)}\nv_add_f32 v56, v56, v57")
    half_sum(a, 56, 57)
    rnd(a, 56)
    a(f"v_mul_f32 v56, {fbits(-math.log2(math.e))}, v56\nv_exp_f32 v56, v56\ns_nop 0\nv_add_f32 v56, 1.0, v56\nv_rcp_f32 v56, v56\ns_nop 0")
    rnd(a, 56)
    a(f"v_sub_f32 v57, 1.0, v56\nv_cvt_pk_bf16_f32 v56, v56, v57\nv_mov_b32 v57, s{S_NON}\nv_lshlrev_b32 v58, 3, v53")
    a(f"s_lshl_b32 s36, s{S_TB}, 3\ns_add_u32 s36, s36, s{S_HB}\ns_lshl_b32 s36, s36, 6\ns_lshl_b32 s38, s37, 14\ns_add_u32 s36, s36, s38")
    a(f"s_waitcnt vmcnt(0)\ns_mov_b32 exec_lo, 1\ns_mov_b32 exec_hi, 1\nbuffer_store_dwordx2 v[56:57], v58, s[{SF}:{SF+3}], s36 offen offset:{F1}{SC}\ns_mov_b64 exec, -1")
    stamp(a, 5)
    a("s_setprio 0")

def att_polls():
    return [f"buffer_load_dword v252, v250, s[{SF}:{SF+3}], s78 offen offset:{F1+4}{SC}",
            f"buffer_load_dword v253, v250, s[{SF}:{SF+3}], s79 offen offset:{F1+4}{SC}",
            f"buffer_load_dwordx2 {vr(A_G,2)}, v251, s[{SF}:{SF+3}], s76 offen offset:{F1}{SC}"]
def role_q(a):
    srd(a, 40, P_X, 0, 2048 * 1280)
    srd(a, 48, P_WQ, 0, 640 * 1280)
    a(f"s_mul_i32 s65, s{S_HB}, 160")
    def outs(i, vrho, vc):
        a(f"v_lshrrev_b32 v33, 1, v{vrho}\nv_xor_b32 v33, v33, v{vrho}\nv_and_b32 v33, 4, v33\nv_mul_u32_u24 v33, 3, v33\nv_xor_b32 v33, v33, v{vrho}")
        a(f"v_mul_u32_u24 v33, 1280, v33\nv_add3_u32 v{25+i}, v33, v{vc}, s65")
    w160_patterns(a, 30, outs)
    a(f"s_lshr_b32 s36, s{S_HB}, 1\ns_xor_b32 s37, s36, s{S_W}\ns_xor_b32 s37, s37, 3")
    a(f"s_mul_i32 s38, s37, 20480\ns_add_u32 s38, s38, {XA}")
    xfrag_addr(a, 34, 30, "s38")
    a(f"s_lshr_b32 s36, s2, 3\ns_lshl_b32 s36, s36, 2\ns_add_u32 s36, s36, s{S_W}\ns_mul_i32 s36, s36, 6400\nv_min_u32 v30, 49, v0\nv_lshlrev_b32 v30, 7, v30")
    a("buffer_load_dword v42, v30, s[48:51], s36 offen")
    a(f"s_mul_i32 s66, s{S_W}, 40960\ns_mul_i32 s67, s{S_W}, 5120")
    TH = int(E("QTH", "63"))
    def chunk(c):
        if c: a(f"s_add_u32 s66, s66, {4*40960}")
        for i in range(5):
            a(f"s_add_u32 m0, s67, {WQ + c*20480 + i*1024}\ns_nop 0")
            a(f"buffer_load_dwordx4 v{25+i}, s[48:51], s66 offen lds")
            if TH < 63: a(f"s_waitcnt vmcnt({TH})")
    a("s_cmp_eq_u32 s37, 3\ns_cbranch_scc1 L_qcrit")
    a("v_lshrrev_b32 v30, 4, v0\nv_and_b32 v31, 15, v0\nv_xor_b32 v31, v31, v30\nv_mul_u32_u24 v30, 1280, v30")
    for i in range(4):
        a(f"v_xor_b32 v32, {4*i}, v31\nv_lshl_add_u32 v{38+i}, v32, 4, v30")
    a(f"s_lshl_b32 s35, s{S_TB}, 6\ns_lshl_b32 s36, s{S_W}, 4\ns_add_u32 s36, s35, s36\ns_mul_i32 s68, s36, 1280")
    for i in range(4):
        for j in range(5):
            a(f"s_add_u32 m0, s38, {5120*i + 768*j}\ns_nop 0")
            a(f"buffer_load_dwordx4 v{38+i}, s[40:43], s68 offen offset:{256*j} lds")
            if TH < 63: a(f"s_waitcnt vmcnt({TH})")
        if i < 3: a("s_add_u32 s68, s68, 5120")
    a("s_branch L_qx\nL_qcrit:")
    lds_spin(a, C_R, 4, 30, 31, sleep=1)
    a("L_qx:")
    chunk(0)
    a("s_waitcnt vmcnt(5)"); stamp(a, 1)
    for ks in range(20):
        a(f"ds_read_b128 {vr(XF+4*ks,4)}, v{34+(ks&3)} offset:{1024*(ks>>2)}")
    lds_arrive(a, C_X, 30, 31)
    chunk(1)
    tr160_addr(a, 2, 3)
    a("v_add_u32 v3, 51200, v2")
    a(f"s_lshr_b32 s36, s{S_W}, 1\ns_mul_i32 s64, s36, 5120\ns_add_u32 s64, s64, {QST}")
    a(f"s_and_b32 s36, s{S_W}, 1\ns_lshl_b32 s36, s36, 4\nv_and_b32 v4, 15, v0\nv_add_u32 v4, s36, v4\nv_lshrrev_b32 v5, 4, v0")
    for b in range(5):
        a(f"v_add_u32 v6, {4*b}, v5\nv_mul_u32_u24 v7, 52, v6\nv_lshrrev_b32 v7, 8, v7\nv_mul_u32_u24 v8, 5, v7\nv_sub_u32 v8, v6, v8")
        a("v_mul_u32_u24 v7, 1280, v7\nv_lshrrev_b32 v9, 1, v8\nv_lshl_add_u32 v7, v9, 9, v7\nv_and_b32 v9, 1, v8\nv_lshl_add_u32 v7, v9, 3, v7")
        a(f"v_lshrrev_b32 v9, 2, v8\nv_sub_u32 v9, 4, v9\nv_lshl_add_u32 v{10+b}, v4, v9, v7\nv_add_u32 v{10+b}, s64, v{10+b}")
    a(f"v_lshlrev_b32 v250, 6, v0\ns_lshl_b32 s78, s{S_W}, 12\ns_add_u32 s79, s78, 0x4000")
    a("v_bfe_u32 v251, v0, 1, 2\nv_lshlrev_b32 v251, 14, v251\nv_bfe_u32 v5, v0, 3, 2\nv_lshl_add_u32 v251, v5, 6, v251\nv_and_b32 v5, 1, v0\nv_lshl_add_u32 v251, v5, 3, v251")
    a(f"s_lshl_b32 s76, s{S_TB}, 9\ns_lshr_b32 s36, s{S_W}, 1\ns_lshl_b32 s36, s36, 8\ns_add_u32 s76, s76, s36")
    lds_spin(a, C_X, 4, 30, 31)
    chunk(2)
    stamp(a, 2)
    WB, ACC = 144, 184
    def rdq(ks, b):
        r = WB + 20 * (ks & 1) + 4 * b
        ad, off = (2, ks * 5120) if ks < 10 else (3, (ks - 10) * 5120)
        a.ds(f"ds_read_b64_tr_b16 {vr(r,2)}, v{ad} offset:{off + 32*b}", ("w", ks, b))
        a.ds(f"ds_read_b64_tr_b16 {vr(r+2,2)}, v{ad} offset:{off + 32*b + 1280}", ("w", ks, b))
    def steps(lo, hi):
        for b in range(5): rdq(lo, b)
        for ks in range(lo, hi):
            for b in range(5):
                a.wait(lg=("w", ks, b))
                a(f"v_mfma_f32_16x16x32_bf16 {vr(ACC+4*b,4)}, {vr(WB+20*(ks&1)+4*b,4)}, {vr(XF+4*ks,4)}, {'0' if ks == 0 else vr(ACC+4*b,4)}")
                if ks + 1 < hi: rdq(ks + 1, b)
    a("s_waitcnt vmcnt(5)\ns_barrier"); stamp(a, 3)
    chunk(3)
    steps(0, 4)
    chunk(4)
    steps(4, 8)
    a("s_waitcnt vmcnt(10)\ns_barrier")
    steps(8, 12)
    a("s_waitcnt vmcnt(5)\ns_barrier")
    steps(12, 16)
    a("s_waitcnt vmcnt(0)\ns_barrier"); stamp(a, 4)
    for x in att_polls(): a(x)
    steps(16, 20)
    a(f"v_mov_b32 v4, {C_NON}\nds_read_b32 v5, v4\ns_mov_b32 s66, {fbits(QSCALE)}\ns_mov_b32 s67, s66")
    for b in range(5):
        r = ACC + 4 * b
        a(f"v_pk_mul_f32 {vr(r,2)}, {vr(r,2)}, s[66:67]\nv_pk_mul_f32 {vr(r+2,2)}, {vr(r+2,2)}, s[66:67]")
        a(f"v_cvt_pk_bf16_f32 v{r}, v{r}, v{r+1}\nv_cvt_pk_bf16_f32 v{r+1}, v{r+2}, v{r+3}")
        a(f"ds_write_b64 v{10+b}, {vr(r,2)}")
    a(f"s_waitcnt lgkmcnt(0)\nv_readfirstlane_b32 s{S_NON}, v5\ns_barrier"); stamp(a, 5)

G_DMA, G_TR, G_ACT, G_ACC, G_AR, G_W = 1, 5, 9, 16, 96, 176
D = 4
def gemm_addr(a):
    a(f"v_lshrrev_b32 v11, 2, v0")
    a(f"v_lshlrev_b32 v12, 7, v11\nv_and_b32 v13, 3, v0\nv_lshl_add_u32 v12, v13, 3, v12\nv_add_u32 v12, s38, v12")
    a(f"v_bfe_u32 v13, v0, 3, 2")
    for cb in range(4):
        a(f"v_xor_b32 v14, {cb}, v13\nv_lshl_add_u32 v{G_TR+cb}, v14, 5, v12")
    a(f"v_lshlrev_b32 v{G_ACT}, 4, v0\nv_add_u32 v{G_ACT+1}, 4096, v{G_ACT}")
def gemm_dma_addr(a, stride, natural):
    a(f"v_bfe_u32 v12, v0, 4, 2\nv_lshlrev_b32 v12, 1, v12\nv_and_b32 v13, 7, v0\nv_xor_b32 v12, v12, v13\nv_lshrrev_b32 v11, 3, v0")
    if natural:
        a("v_and_b32 v13, 4, v11\nv_add_u32 v11, v11, v13")
    a(f"v_mul_u32_u24 v11, {stride}, v11\nv_lshl_add_u32 v{G_DMA}, v12, 4, v11")
    for i in range(1, 4):
        row = (16 * (i & 1) + 4 * (i >> 1)) if natural else 8 * i
        a(f"v_add_u32 v{G_DMA+i}, {row*stride - 1024*i}, v{G_DMA}")

PAIR = int(E("PAIR", "2"))
class Gemm:
    def __init__(self, a, name, nsteps, wsrd, asrd, s_w, s_a, s_wl, s_al, wstep, astep, w_is_a):
        self.__dict__.update(locals())
    def adv(self, r, lim, step):
        self.a(f"s_add_u32 s{r}, s{r}, {step}\ns_cmp_ge_u32 s{r}, s{lim}\ns_cselect_b32 s36, {step*self.nsteps}, 0\ns_sub_u32 s{r}, s{r}, s36")
    def start(self, srot):
        a = self.a
        for r, lim, step in ((self.s_w, self.s_wl, self.wstep), (self.s_a, self.s_al, self.astep)):
            a(f"s_add_u32 s{lim}, s{r}, {step*self.nsteps}\ns_mul_i32 s36, s{srot}, {step}\ns_add_u32 s{r}, s{r}, s36")
    def dma(self, s, i):
        a = self.a
        if i == 0:
            a(f"s_add_u32 m0, s38, {(s % D)*4096}")
            if s > 0: self.adv(self.s_w, self.s_wl, self.wstep)
            else: a("s_nop 0")
        a.vmem(f"buffer_load_dwordx4 v{G_DMA+i}, {sr(self.wsrd,4)}, s{self.s_w} offen offset:{1024*i} lds", (self.name, "w", s))
    def act(self, s, b):
        a = self.a
        if b == 0 and s > 0: self.adv(self.s_a, self.s_al, self.astep)
        r = G_AR + 20 * (s % D) + 4 * b
        ad, off = (G_ACT, 1024 * b) if b < 4 else (G_ACT + 1, 0)
        a.vmem(f"buffer_load_dwordx4 {vr(r,4)}, v{ad}, {sr(self.asrd,4)}, s{self.s_a} offen offset:{off}{E('ASC', SC)}", (self.name, "a", s))
    def rd(self, s, k):
        r = G_W + 16 * (s & 1) + 2 * k
        self.a.ds(f"ds_read_b64_tr_b16 {vr(r,2)}, v{G_TR+(k>>1)} offset:{(s % D)*4096 + 2048*(k&1)}", (self.name, s))
    def pro_w(self):
        for s in range(D):
            for i in range(4): self.dma(s, i)
    def pro_a(self):
        for s in range(D):
            for b in range(5): self.act(s, b)
    def pro_both(self):
        for s in range(D):
            for i in range(4): self.dma(s, i)
            for b in range(5): self.act(s, b)
    def run(self, after_last_read=None, last_extra=None):
        a = self.a; n = self.nsteps
        a.wait(vm=(self.name, "w", 0))
        for k in range(8): self.rd(0, k)
        for s in range(n):
            need = [(self.name, "a", s)] + ([(self.name, "w", s + 1)] if s + 1 < n else [])
            a.wait(vm=need, lg=(self.name, s))
            if s == n - 1 and after_last_read: after_last_read()
            for m in range(20):
                b, cb = m >> 2, m & 3
                acc = vr(G_ACC + 4 * m, 4)
                w = vr(G_W + 16 * (s & 1) + 4 * cb, 4); x = vr(G_AR + 20 * (s % D) + 4 * b, 4)
                if PAIR and m % PAIR == 0: a("s_setprio 0")
                a(f"v_mfma_f32_16x16x32_bf16 {acc}, {w if self.w_is_a else x}, {x if self.w_is_a else w}, {'0' if s == 0 else acc}")
                if PAIR and m % PAIR == 0: a("s_setprio 2")
                if m & 1:
                    k = m >> 1
                    if k < 8 and s + 1 < n: self.rd(s + 1, k)
                    if s + D < n:
                        if k & 1: self.act(s + D, b)
                        elif k < 8: self.dma(s + D, k >> 1)
                if s == n - 1 and last_extra: last_extra(m)

def gelu8(a, r, t):
    for j in range(0, 8, 2): a(f"v_pk_mul_f32 {vr(t+j,2)}, {vr(r+j,2)}, {vr(r+j,2)}")
    for j in range(0, 8, 2): a(f"v_pk_fma_f32 {vr(t+j,2)}, {vr(t+j,2)}, s[70:71], v[14:15]")
    for j in range(0, 8, 2): a(f"v_pk_mul_f32 {vr(t+j,2)}, {vr(t+j,2)}, {vr(r+j,2)}")
    for j in range(8): a(f"v_exp_f32 v{t+j}, v{t+j}")
    for j in range(0, 8, 2): a(f"v_pk_add_f32 {vr(t+j,2)}, {vr(t+j,2)}, 1.0 op_sel_hi:[1,0]")
    for j in range(8): a(f"v_rcp_f32 v{t+j}, v{t+j}")
    for j in range(0, 8, 2): a(f"v_pk_mul_f32 {vr(r+j,2)}, {vr(r+j,2)}, {vr(t+j,2)}")

WM, WT, WA = 228, 233, 238
def role_gemm(a):
    a("s_lshl_b32 s38, s37, 14")
    gemm_addr(a)
    a(f"s_and_b32 s35, s2, 7\ns_lshr_b32 s36, s2, 3")
    a("s_and_b32 s64, s35, 1\ns_lshl_b32 s64, s64, 2\ns_and_b32 s65, s36, 3\ns_add_u32 s64, s64, s65")
    a("s_lshr_b32 s65, s35, 1\ns_mul_i32 s65, s65, 7\ns_lshr_b32 s36, s36, 2\ns_add_u32 s65, s65, s36")
    a("s_cmp_ge_u32 s36, 7\ns_cselect_b32 s65, 28, s65")
    a("s_and_b32 s84, s64, 3\ns_lshl_b32 s84, s84, 1\ns_add_u32 s84, s84, s36\ns_and_b32 s36, s35, 1\ns_add_u32 s84, s84, s36\ns_lshl_b32 s84, s84, 1\ns_and_b32 s84, s84, 15")
    a(f"s_and_b32 s85, s{S_TB}, 3\ns_mul_i32 s85, s85, 7\ns_lshr_b32 s85, s85, 1\ns_lshl_b32 s36, s{S_HB}, 1\ns_add_u32 s85, s85, s36\ns_cmp_ge_u32 s85, 14\ns_cselect_b32 s36, 14, 0\ns_sub_u32 s85, s85, s36")
    if E("NOROT"): a("s_mov_b32 s84, 0\ns_mov_b32 s85, 0")
    srd(a, 40, P_W1, 0, 2048 * 3456)
    srd(a, 44, P_WS, HF, 64 * 40960)
    srd(a, 48, P_B1, 0, 3456)
    srd(a, 56, P_W2, 0, 1728 * 4096)
    srd(a, 52, P_WS, GF, 54 * 40960)
    gemm_dma_addr(a, 3456, True)
    a(f"s_mul_i32 s66, s37, {32*3456}\ns_lshl_b32 s36, s65, 7\ns_add_u32 s66, s66, s36")
    a(f"s_mul_i32 s67, s37, 40960\ns_mul_i32 s36, s64, 5120\ns_add_u32 s67, s67, s36")
    a(f"s_lshl_b32 s76, s37, 17\ns_lshl_b32 s36, s{S_TB}, 7\ns_add_u32 s76, s76, s36")
    a(f"s_mul_i32 s77, s37, 40960\ns_mul_i32 s36, s{S_HB}, 5120\ns_add_u32 s77, s77, s36")
    a(f"s_mul_i32 s70, s{S_HB}, 160")
    def outs(i, vrho, vc):
        a(f"v_lshrrev_b32 v14, 4, v{vrho}\nv_lshl_add_u32 v14, v14, 2, v{vrho}\nv_mul_u32_u24 v14, 1280, v14\nv_add3_u32 v{WM+i}, v14, v{vc}, s70")
        a(f"v_lshrrev_b32 v14, 4, v{vrho}\nv_bfe_u32 v15, v{vrho}, 2, 1\nv_lshl_add_u32 v14, v14, 1, v15\nv_bfe_u32 v15, v{vrho}, 3, 1\nv_lshl_add_u32 v14, v14, 1, v15")
        a(f"v_mul_u32_u24 v14, 20, v14\nv_and_b32 v15, 3, v{vrho}\nv_add3_u32 v14, v14, v15, 16\nv_mul_u32_u24 v14, 1280, v14\nv_add3_u32 v{WT+i}, v14, v{vc}, s70")
    w160_patterns(a, 11, outs)
    tr160_addr(a, WA, 11)
    a(f"v_add_u32 v{WA}, s38, v{WA}")
    a("v_lshrrev_b32 v11, 2, v0\nv_lshlrev_b32 v11, 4, v11\nv_and_b32 v12, 3, v0\nv_add_u32 v11, v11, v12\nv_lshlrev_b32 v240, 6, v11")
    a(f"s_lshr_b32 s36, s64, 2\ns_add_u32 s36, s36, 2\ns_lshl_b32 s36, s36, 14\ns_lshl_b32 s68, s37, 8\ns_add_u32 s78, s36, s68")
    a("s_and_b32 s36, s37, 1\ns_lshl_b32 s36, s36, 6\ns_lshl_b32 s68, s65, 7\ns_add_u32 s68, s68, s36\nv_lshrrev_b32 v11, 4, v0\nv_lshlrev_b32 v11, 3, v11")
    g1 = Gemm(a, "g1", 16, 40, 44, 66, 67, 80, 81, 4 * 32 * 3456, 4 * 40960, True)
    g2 = Gemm(a, "g2", 14, 56, 52, 76, 77, 82, 83, 4 * 32 * 4096, 4 * 40960, False)
    g1.start(84); g2.start(85)
    a("s_barrier\n" * 5); stamp(a, 6)
    a("s_setprio 2\ns_cmp_ge_u32 s65, 27\ns_cbranch_scc1 L_nog1")
    a.vmem("buffer_load_dwordx2 v[208:209], v11, s[48:51], s68 offen", "b1")
    a.vmem("buffer_load_dwordx2 v[210:211], v11, s[48:51], s68 offen offset:32", "b1")
    poll(a, [f"buffer_load_dword v12, v240, s[{SF}:{SF+3}], s78 offen offset:{F1+4}{SC}"], [12])
    lds_spin(a, C_KV, 4, 12, 13, sleep=1); stamp(a, 7)
    g1.pro_both()
    if not PAIR: a(f"s_setprio {E('GP', '0')}")
    def pre2():
        gemm_dma_addr(a, 4096, False)
        g2.pro_w()
    g1.run(after_last_read=pre2)
    a("s_setprio 2"); stamp(a, 8)
    a(f"s_mul_i32 s36, s37, 20480\ns_add_u32 s36, s36, {SCR}\nv_add_u32 v11, s36, v{G_ACT}")
    unpack(a, 212, 208, 4)
    for blk in range(20):
        a.ds(f"ds_write_b128 v11, {vr(G_ACC+4*blk,4)} offset:{1024*blk}")
    lds_arrive(a, C_G1A, 12, 13)
    k = 2.0 * math.sqrt(2.0 / math.pi) * math.log2(math.e)
    a(f"s_mov_b32 s70, {fbits(-k*0.044715)}\ns_mov_b32 s71, s70\nv_mov_b32 v14, {fbits(-k)}\nv_mov_b32 v15, v14")
    a(f"s_lshl_b32 s36, s37, 11\ns_add_u32 s36, s36, {SCR}\nv_add_u32 v11, s36, v{G_ACT}\nv_add_u32 v220, 40960, v11")
    a("s_lshl_b32 s69, s65, 1\ns_and_b32 s36, s37, 1\ns_add_u32 s69, s69, s36\ns_mul_i32 s69, s69, 40960")
    a("s_mul_i32 s36, s64, 5120\ns_add_u32 s69, s69, s36\ns_lshr_b32 s36, s37, 1\ns_lshl_b32 s36, s36, 10\ns_add_u32 s69, s69, s36")
    a(f"s_mul_i32 s79, s64, 27\ns_add_u32 s79, s79, s65\ns_lshl_b32 s79, s79, 2\ns_add_u32 s79, s79, s37\ns_lshl_b32 s79, s79, 6\ns_add_u32 s79, s79, {F2}")
    lds_spin(a, C_G1A, 4, 12, 13, sleep=1)
    R = 16
    def rdu(r):
        for src in range(4):
            for e in range(2):
                a.ds(f"ds_read_b128 {vr(R+32*r+8*src+4*e,4)}, v{11 if src < 2 else 220} offset:{(src&1)*20480 + 8192*r + 1024*e}", ("u", r))
    def fin(r):
        b = R + 32 * r
        for j in range(0, 8, 2):
            a(f"v_pk_add_f32 {vr(b+j,2)}, {vr(b+j,2)}, {vr(b+8+j,2)}\nv_pk_add_f32 {vr(b+16+j,2)}, {vr(b+16+j,2)}, {vr(b+24+j,2)}")
        for j in range(0, 8, 2): a(f"v_pk_add_f32 {vr(b+j,2)}, {vr(b+j,2)}, {vr(212+j,2)}")
        for j in range(0, 8, 2): a(f"v_pk_add_f32 {vr(b+j,2)}, {vr(b+j,2)}, {vr(b+16+j,2)}")
        gelu8(a, b, b + 8)
        for j in range(4): a(f"v_cvt_pk_bf16_f32 v{b+j}, v{b+2*j}, v{b+2*j+1}")
        a(f"buffer_store_dwordx4 {vr(b,4)}, v{G_ACT + (r>>1)}, s[52:55], s69 offen offset:{2048*(r&1)}{SC}")
    rdu(0); a.wait(lg="all"); rdu(1)
    fin(0)
    a.wait(lg="all")
    a(f"s_cmp_ge_u32 s37, 2\ns_cbranch_scc1 L_g1two")
    rdu(2); a.wait(lg="all"); fin(2)
    a("L_g1two:")
    lds_arrive(a, C_G1B, 12, 13)
    fin(1)
    flag(a, "s79", 12)
    a("s_branch L_g1done\nL_nog1:")
    lds_arrive(a, C_G1B, 12, 13)
    lds_spin(a, C_KV, 4, 12, 13, sleep=1)
    if not E("NOPF"):
        a("s_cmp_eq_u32 s65, 27\ns_cbranch_scc1 L_nopf")
        a("v_lshrrev_b32 v11, 2, v0\nv_lshlrev_b32 v11, 12, v11\nv_and_b32 v12, 3, v0\nv_lshl_add_u32 v11, v12, 7, v11")
        a("s_and_b32 s36, s64, 3\ns_lshl_b32 s36, s36, 2\ns_add_u32 s86, s36, s37\ns_lshl_b32 s87, s86, 16\ns_lshl_b32 s36, s35, 9\ns_add_u32 s87, s87, s36")
        for i in range(7):
            a("buffer_load_dword v12, v11, s[56:59], s87 offen\ns_add_u32 s87, s87, 0x100000\ns_waitcnt vmcnt(0)")
        srd(a, 40, P_WO, 0, 640 * 1280)
        a("v_lshlrev_b32 v11, 7, v0\ns_lshl_b32 s87, s86, 13")
        for i in range(7):
            a("buffer_load_dword v12, v11, s[40:43], s87 offen\ns_add_u32 s87, s87, 0x20000\ns_waitcnt vmcnt(0)")
        a("L_nopf:")
    pre2()
    a("L_g1done:"); stamp(a, 9)
    srd(a, 48, P_B2, 0, 4096)
    srd(a, 40, P_WO, 0, 640 * 1280)
    a(f"s_mul_i32 s36, s{S_TB}, 81920\ns_add_u32 s36, s36, {OF}")
    srd(a, 60, P_WS, "s36", 81920)
    OM, B2 = 208, 248
    a("v_bfe_u32 v11, v0, 1, 2\nv_lshlrev_b32 v11, 14, v11\nv_bfe_u32 v12, v0, 3, 1\nv_lshl_add_u32 v11, v12, 6, v11\nv_and_b32 v12, 1, v0\nv_lshl_add_u32 v241, v12, 3, v11")
    a(f"v_and_b32 v11, 15, v0\nv_lshlrev_b32 v11, 1, v11\ns_lshl_b32 s68, s{S_TB}, 9\ns_lshl_b32 s69, s{S_TB}, 7")
    for cb in range(4):
        a(f"buffer_load_ushort v{B2+cb}, v11, s[48:51], s69 offen offset:{32*cb}")
    a("s_lshr_b32 s36, s37, 1\nv_lshrrev_b32 v11, 1, v0\nv_lshl_add_u32 v11, v11, 1, s36\ns_sub_u32 s36, 26, s36\nv_min_u32 v11, s36, v11")
    a("v_and_b32 v12, 1, v0\nv_lshlrev_b32 v12, 1, v12\nv_lshl_add_u32 v11, v11, 2, v12\nv_lshlrev_b32 v240, 6, v11")
    a(f"s_mul_i32 s78, s{S_HB}, {27*256}\ns_and_b32 s36, s37, 1\ns_lshl_b32 s36, s36, 6\ns_add_u32 s78, s78, s36\ns_add_u32 s78, s78, {F2}")
    poll(a, [f"buffer_load_dwordx2 {vr(OM+2*cb,2)}, v241, s[{SF}:{SF+3}], s68 offen offset:{F1+128*cb}{SC}" for cb in range(4)], [OM + 2 * cb + 1 for cb in range(4)])
    for cb in range(4):
        a(f"v_and_b32 v{OM+2*cb}, 0xffff0000, v{OM+2*cb}\nv_lshlrev_b32 v{B2+cb}, 16, v{B2+cb}\nv_mul_f32 v{OM+2*cb+1}, v{B2+cb}, v{OM+2*cb}")
    a("s_cmp_eq_u32 s37, 0\ns_cbranch_scc1 L_keepb")
    for cb in range(4): a(f"v_mov_b32 v{OM+2*cb+1}, 0")
    a("L_keepb:")
    poll(a, [f"buffer_load_dword v12, v240, s[{SF}:{SF+3}], s78 offen{SC}"], [12]); stamp(a, 10)
    g2.pro_a()
    if not PAIR: a(f"s_setprio {E('GP', '0')}")
    a(f"s_mul_i32 s71, s37, {160*1280}")
    def wo_dma(i):
        if i < 4: a(f"s_add_u32 s70, s71, {40*1280*i}")
        for p in range(5):
            a(f"s_add_u32 m0, s38, {(i % 3)*5120 + 1024*p}\ns_nop 0")
            a.vmem(f"buffer_load_dwordx4 v{(WM if i < 4 else WT)+p}, s[40:43], {'s70' if i < 4 else 's71'} offen lds", ("wo", i))
    g2.run(after_last_read=lambda: [wo_dma(i) for i in range(3)])
    a("s_setprio 2"); stamp(a, 11)
    a(f"s_lshl_b32 s36, s37, 3\nv_add_u32 v11, s36, v0\ns_lshl_b32 s36, s{S_HB}, 2\nv_and_b32 v12, 3, v0\nv_add_u32 v12, s36, v12\nv_cmp_gt_u32 vcc, 8, v0")
    a(f"s_lshl_b32 s78, s{S_TB}, 11\ns_add_u32 s78, s78, {F3}\nv_cndmask_b32 v11, v12, v11, vcc\nv_lshlrev_b32 v240, 6, v11")
    for b in range(5):
        for cb in range(4):
            r = G_ACC + 4 * (4 * b + cb)
            for h in (0, 2):
                a(f"v_pk_fma_f32 {vr(r+h,2)}, {vr(r+h,2)}, {vr(OM+2*cb,2)}, {vr(OM+2*cb,2)} op_sel:[0,0,1] op_sel_hi:[1,0,1]")
    WOF = [176, 196, 216, 176, 196]
    def wo_rd(i):
        for b in range(5):
            r = WOF[i] + 4 * b
            a.ds(f"ds_read_b64_tr_b16 {vr(r,2)}, v{WA} offset:{(i % 3)*5120 + 32*b}", ("wo", i))
            a.ds(f"ds_read_b64_tr_b16 {vr(r+2,2)}, v{WA} offset:{(i % 3)*5120 + 32*b + 1280}", ("wo", i))
    for i in range(3):
        a.wait(vm=("wo", i)); wo_rd(i); a.wait(lg="all")
        if i < 2: wo_dma(3 + i)
    a(f"v_and_b32 v11, 15, v0\nv_mul_u32_u24 v11, 11, v11\nv_lshrrev_b32 v12, 5, v0\nv_add_u32 v11, v11, v12\nv_lshrrev_b32 v12, 4, v0\nv_lshlrev_b32 v12, 8, v12")
    a(f"s_mul_i32 s36, s37, 20480\ns_add_u32 s36, s36, {SCR}\nv_add_u32 v12, s36, v12")
    for b in range(5):
        a(f"v_add_u32 v13, {2*b}, v11\nv_and_b32 v13, 15, v13\nv_lshl_add_u32 v{G_DMA+b}, v13, 4, v12")
    final_addr(a)
    a("s_mul_i32 s70, s37, 20480"); stamp(a, 12)
    poll(a, [f"buffer_load_dword v12, v240, s[{SF}:{SF+3}], s78 offen{SC}"], [12], sleep=1); stamp(a, 13)
    for i in range(5):
        if i: a("s_add_u32 s70, s70, 4096")
        for cb in range(4):
            a.vmem(f"buffer_load_dwordx4 {vr(G_AR+16*i+4*cb,4)}, v{G_ACT}, s[60:63], s70 offen offset:{1024*cb}{SC}", ("o", i))
    for i in range(5):
        a.wait(vm=("o", i), lg=("wo", i))
        for b in range(5):
            for cb in range(4):
                acc = vr(G_ACC + 4 * (4 * b + cb), 4)
                a(f"v_mfma_f32_16x16x32_bf16 {acc}, {vr(WOF[i]+4*b,4)}, {vr(G_AR+16*i+4*cb,4)}, {acc}")
                if i == 4 and b >= 2:
                    blk = 4 * (b - 2) + cb
                    a.ds(f"ds_write_b128 v{G_DMA+b-2}, {vr(G_ACC+4*blk,4)} offset:{1024*blk}")
        if i < 2: wo_rd(3 + i)
    a("s_nop 0")
    for blk in range(12, 20):
        if blk == 16: a("s_nop 0")
        a.ds(f"ds_write_b128 v{G_DMA+(blk>>2)}, {vr(G_ACC+4*blk,4)} offset:{1024*blk}")
    stamp(a, 14)

FA = 242
def final_addr(a):
    for r in range(2):
        a(f"s_add_u32 s36, s{S_W}, {r*8}\ns_lshl_b32 s36, s36, 6\nv_add_u32 v12, s36, v0")
        a("v_mul_u32_u24 v13, 6554, v12\nv_lshrrev_b32 v13, 16, v13\nv_mul_u32_u24 v14, 10, v13\nv_sub_u32 v14, v12, v14")
        a(f"v_mul_u32_u24 v{FA+3*r}, 1280, v13\nv_lshl_add_u32 v{FA+3*r}, v14, 4, v{FA+3*r}")
        a("v_and_b32 v15, 15, v13\nv_mul_u32_u24 v15, 11, v15\nv_add_u32 v15, v15, v14\nv_and_b32 v15, 15, v15\nv_lshlrev_b32 v15, 4, v15")
        a("v_lshrrev_b32 v13, 4, v13\nv_lshl_add_u32 v15, v13, 10, v15\nv_lshrrev_b32 v13, 1, v14\nv_lshl_add_u32 v15, v13, 12, v15\nv_and_b32 v13, 1, v14\nv_lshl_add_u32 v15, v13, 9, v15")
        a(f"v_add_u32 v{FA+1+3*r}, {SCR}, v15\nv_add_u32 v{FA+2+3*r}, {SCR+40960}, v15")
def final(a):
    srd(a, 40, P_OUT, 0, 2048 * 1280)
    a(f"s_mul_i32 s64, s{S_TB}, {64*1280}\ns_mul_i32 s36, s{S_HB}, 160\ns_add_u32 s64, s64, s36")
    a("s_waitcnt lgkmcnt(0)\ns_barrier"); a.lg = []
    for r in range(2):
        if r == 1: a(f"s_cmp_ge_u32 s{S_W}, 2\ns_cbranch_scc1 L_fin")
        b = 32 + 32 * r
        for src in range(4):
            for e in range(2):
                a.ds(f"ds_read_b128 {vr(b+8*src+4*e,4)}, v{FA+1+3*r+(src>>1)} offset:{(src&1)*20480 + 256*e}")
        a.wait(lg="all")
        for j in range(0, 8, 2):
            a(f"v_pk_add_f32 {vr(b+j,2)}, {vr(b+j,2)}, {vr(b+8+j,2)}\nv_pk_add_f32 {vr(b+16+j,2)}, {vr(b+16+j,2)}, {vr(b+24+j,2)}")
        for j in range(0, 8, 2): a(f"v_pk_add_f32 {vr(b+j,2)}, {vr(b+j,2)}, {vr(b+16+j,2)}")
        for j in range(4): a(f"v_cvt_pk_bf16_f32 v{b+j}, v{b+2*j}, v{b+2*j+1}")
        a(f"buffer_store_dwordx4 {vr(b,4)}, v{FA+3*r}, s[40:43], s64 offen")
    a(f"s_or_b32 s36, s2, s{S_W}\ns_cbranch_scc1 L_fin")
    a(f"v_mov_b32 v1, {GEN}\nv_mov_b32 v2, s{S_NON}\ns_mov_b64 exec, 1\nbuffer_store_dword v2, v1, s[{SF}:{SF+3}], 0 offen\ns_mov_b64 exec, -1")

A_IDX, A_K0, A_KT, A_V, A_G = 1, 2, 3, 4, 248
A_Q, A_S, A_KV, A_O, NBUF = 8, 56, 88, 144, 4
GAPS = tuple(int(c) for c in E('GAPS', '24442'))
def kv_load(a, buf, soff):
    b = A_KV + 14 * buf
    a(f"buffer_load_dwordx4 {vr(b,4)}, v{A_K0}, s[40:43], {soff} offen{SC}")
    a(f"buffer_load_dwordx2 {vr(b+4,2)}, v{A_KT}, s[40:43], {soff} offen{SC}")
    a(f"buffer_load_dwordx4 {vr(b+6,4)}, v{A_V}, s[40:43], {soff} offen offset:{V_A}{SC}")
    a(f"buffer_load_dwordx4 {vr(b+10,4)}, v{A_V}, s[40:43], {soff} offen offset:{V_B}{SC}")
def qk(buf, t, s):
    b = A_KV + 14 * buf
    return (f"v_mfma_f32_32x32x16_bf16 {vr(s,16)}, {vr(b,4)}, {vr(A_Q+6*t,4)}, 0",
            f"v_mfma_f32_32x32x8_bf16 {vr(s,16)}, {vr(b+4,2)}, {vr(A_Q+6*t+4,2)}, {vr(s,16)}")
def pv(buf, t, s, e):
    b = A_KV + 14 * buf
    return f"v_smfmac_f32_32x32x32_bf16 {vr(A_O+12*t,16)}, {vr(b+6+4*e,4)}, {vr(s+8*e,8)}, v{A_IDX}"
def period(a, j, t, last=False, extra=None):
    cur, oth = (A_S, A_S + 16) if t % 2 == 0 else (A_S + 16, A_S)
    pb = pv(j, t - 1, oth, 1) if t > 0 else pv((j - 1) % NBUF, 7, oth, 1)
    qa, qb = qk(j, t + 1, oth) if t < 7 else qk((j + 1) % NBUF, 0, oth)
    if last and t == 7: qa = qb = None
    i = 0
    for n, m in zip(GAPS, (pb, qa, qb, pv(j, t, cur, 0), None)):
        for _ in range(n):
            a(f"v_exp_f32 v{cur+i}, v{cur+i}"); i += 1
            if extra and i in extra: a(extra[i])
        if m: a(m)

def role_att(a):
    a("s_setprio 1")
    a(f"s_mul_i32 s36, s{S_W}, {16*KT}\ns_add_u32 s36, s36, {KF}")
    srd(a, 40, P_WS, "s36", 16 * KT)
    a(f"v_lshlrev_b32 v{A_K0}, 4, v0\nv_and_b32 v6, 31, v0\nv_lshrrev_b32 v7, 5, v0")
    a(f"s_lshl_b32 s37, s{S_W}, 1\ns_xor_b32 s37, s37, 6\nv_lshlrev_b32 v5, 3, v0")
    for t in range(0, 8, 2):
        a(f"s_xor_b32 s36, s37, {t}\ns_mul_i32 s36, s36, 1280\ns_add_u32 s36, s36, {QST}\nv_add_u32 v{A_S+t}, s36, v{A_K0}\nv_add_u32 v{A_S+t+1}, s36, v5")
    for t in range(8):
        a(f"ds_read_b128 {vr(A_Q+6*t,4)}, v{A_S+(t&6)} offset:{1280*(t&1)}\nv_mov_b64 {vr(A_Q+6*t+4,2)}, 0")
    a("s_mov_b32 exec_hi, 0")
    for t in range(8):
        a(f"ds_read_b64 {vr(A_Q+6*t+4,2)}, v{A_S+(t&6)+1} offset:{1280*(t&1) + 1024}")
    a("s_mov_b32 exec_hi, -1")
    a(f"v_lshlrev_b32 v{A_KT}, 3, v0\nv_add_u32 v{A_KT}, {K_T}, v{A_KT}\nv_mov_b32 v5, 0x40000000\nv_cmp_lt_u32 vcc, 31, v0\ns_nop 1\nv_cndmask_b32 v{A_KT}, v{A_KT}, v5, vcc")
    a(f"v_lshlrev_b32 v{A_V}, 8, v7\nv_lshlrev_b32 v7, 7, v7\nv_add_u32 v7, 256, v7\nv_cmp_lt_u32 vcc, 15, v6\ns_nop 1\nv_cndmask_b32 v{A_V}, v{A_V}, v7, vcc")
    a(f"v_lshl_add_u32 v{A_V}, v6, 4, v{A_V}\nv_cmp_lt_u32 vcc, 20, v6\ns_nop 1\nv_cndmask_b32 v{A_V}, v{A_V}, v5, vcc")
    a(f"v_mov_b32 v{A_IDX}, 0xdddddddd\ns_mov_b32 s39, 0")
    a(f"s_lshr_b32 s88, s2, 4\ns_mul_i32 s88, s88, {KT}")
    if E("NOROT"): a("s_mov_b32 s88, 0")
    poll(a, att_polls(), [252, 253, A_G + 1], sleep=1, issued=True)
    stamp(a, 6)
    hold(a, "att")
    a("L_att_start:")
    nxt = f"s_add_u32 s64, s64, {KT}\ns_cmp_eq_u32 s64, {16*KT}\ns_cselect_b32 s64, 0, s64\ns_cmp_eq_u32 s64, s88\ns_cselect_b32 s64, {17*KT}, s64"
    a("s_mov_b32 s64, s88"); kv_load(a, 0, "s64")
    a(nxt); kv_load(a, 1, "s64")
    a(nxt); kv_load(a, 2, "s64")
    lds_arrive(a, C_KV, 6, 7)
    for r in range(A_O, A_O + 100, 2): a(f"v_mov_b64 {vr(r,2)}, 0")
    for r in range(A_S + 24, A_S + 32, 2): a(f"v_mov_b64 {vr(r,2)}, 0")
    for r in range(A_KV + 14 * 3 + 10, A_KV + 14 * 3 + 14, 2): a(f"v_mov_b64 {vr(r,2)}, 0")
    a("s_mov_b32 s65, 3\ns_waitcnt vmcnt(8) lgkmcnt(0)")
    if E("NOATT"): a("s_branch L_att_last")
    stamp(a, 7)
    for m in qk(0, 0, A_S): a(m)
    a.nop(12)
    def keytile(j, last=False):
        for t in range(8):
            extra = {}
            if t == 1 and not last:
                x = Asm(); kv_load(x, (j - 1) % NBUF, "s64")
                extra = {3: x.l[0], 6: x.l[1], 9: x.l[2], 12: x.l[3]}
            if t == 0 and not last:
                y = nxt.split("\n")
                extra = {3: y[0], 5: y[1], 7: y[2], 9: y[3], 11: y[4]}
            if t == 7 and not last:
                extra = {3: "s_waitcnt vmcnt(8)"}
            if last and t >= 2:
                o = A_O + 12 * (t - 2)
                extra = {3 + 3 * i: f"ds_write_b128 v6, {vr(o+4*i,4)} offset:{3072*(t-2) + 1024*i}" for i in range(3)}
            period(a, j, t, last, extra)
    a(".p2align 3")
    a("L_att_loop:")
    for j in range(3): keytile(j)
    a("s_cmp_eq_u32 s65, 0\ns_cbranch_scc1 L_att_last")
    keytile(3)
    a("s_sub_u32 s65, s65, 1\ns_branch L_att_loop")
    a("L_att_last:"); stamp(a, 8)
    lds_spin(a, C_G1B, 4, 6, 7, sleep=(8 if E("NOATT") else 0))
    a(f"s_mul_i32 s36, s{S_W}, 18432\ns_add_u32 s36, s36, {SCR}\nv_add_u32 v6, s36, v{A_K0}")
    keytile(3, True)
    a.nop(2)
    a(pv(3, 7, A_S + 16, 1))
    a("s_setprio 3")
    stamp(a, 9)
    lds_arrive(a, C_ATT, 6, 7)
    for j in (1, 2, 3):
        a(f"s_xor_b32 s36, s{S_W}, {j}\ns_mul_i32 s36, s36, 18432\ns_add_u32 s36, s36, {SCR + 3072*(6 ^ (2*j))}\nv_add_u32 v{A_S+j}, s36, v{A_K0}")
    a(f"s_mul_i32 s66, s39, 12\ns_add_u32 s66, s66, 4\ns_waitcnt vmcnt(0)")
    lds_spin(a, C_ATT, "s66", 6, 7)
    stamp(a, 10)
    P = A_KV
    for j in (1, 2, 3):
        for i in range(6):
            a.ds(f"ds_read_b128 {vr(P+24*(j-1)+4*i,4)}, v{A_S+j} offset:{1024*i}", ("p", j))
    T = A_S + 4
    a(f"s_mul_i32 s36, s{S_TB}, 81920\ns_add_u32 s36, s36, {OF}")
    srd(a, 52, P_WS, "s36", 81920)
    a(f"v_and_b32 v{T+6}, 15, v0\nv_lshlrev_b32 v{T+6}, 4, v{T+6}\nv_bfe_u32 v{T+7}, v0, 4, 1\nv_lshl_add_u32 v{T+6}, v{T+7}, 10, v{T+6}")
    a(f"v_lshrrev_b32 v{T+7}, 5, v0\nv_lshl_add_u32 v{T+7}, v{T+7}, 8, v{T+6}\nv_lshlrev_b32 v{T+8}, 16, v{A_G}")
    a(f"s_lshr_b32 s66, s{S_HB}, 1\ns_mul_i32 s66, s66, 20480\ns_lshr_b32 s36, s{S_W}, 1\ns_lshl_b32 s36, s36, 11\ns_add_u32 s66, s66, s36")
    a(f"s_and_b32 s36, s{S_HB}, 1\ns_lshl_b32 s36, s36, 1\ns_and_b32 s67, s{S_W}, 1\ns_add_u32 s36, s36, s67")
    a("s_lshl_b32 s67, s36, 12\ns_add_u32 s67, s67, s66\ns_lshl_b32 s36, s36, 8\ns_add_u32 s66, s66, s36\ns_add_u32 s66, s66, 16384")
    a(f"s_lshl_b32 s77, s{S_TB}, 3\ns_add_u32 s77, s77, s{S_HB}\ns_lshl_b32 s77, s77, 2\ns_add_u32 s77, s77, s{S_W}\ns_lshl_b32 s77, s77, 6\ns_add_u32 s77, s77, {F3}")
    O = A_O + 72
    for j in (1, 2, 3):
        a.wait(lg=("p", j))
        for i in range(0, 24, 2):
            a(f"v_pk_add_f32 {vr(O+i,2)}, {vr(O+i,2)}, {vr(P+24*(j-1)+i,2)}")
    a(f"v_mov_b32 v{T}, v{O+8}\nv_mov_b32 v{T+2}, v{O+8}\nv_mov_b32 v{T+1}, v{O+20}\nv_mov_b32 v{T+4}, v{O+20}\ns_nop 0")
    a(f"v_permlane32_swap_b32 v{T}, v{T+2}\nv_permlane32_swap_b32 v{T+1}, v{T+4}")
    a("s_cmp_lg_u32 s39, 0\ns_cbranch_scc1 L_att_ok")
    a(f"s_mov_b32 s68, {fbits(2.0**-80)}\ns_mov_b32 s69, {fbits(2.0**80)}")
    a(f"v_cmp_nle_f32 s[80:81], s68, v{T+2}\nv_cmp_nge_f32 s[82:83], s69, v{T+2}\nv_cmp_nle_f32 s[84:85], s68, v{T+4}\nv_cmp_nge_f32 s[86:87], s69, v{T+4}")
    a("s_nop 1\ns_or_b64 s[80:81], s[80:81], s[82:83]\ns_or_b64 s[84:85], s[84:85], s[86:87]\ns_or_b64 s[80:81], s[80:81], s[84:85]")
    a(f"s_cselect_b32 s36, 0x101, 1\nv_mov_b32 v6, {C_BAD}\nv_mov_b32 v7, s36\ns_mov_b64 exec, 1\nds_add_u32 v6, v7\ns_mov_b64 exec, -1")
    a("L_att_ok:")
    a(f"v_rcp_f32 v{T+2}, v{T+2}\nv_rcp_f32 v{T+4}, v{T+4}\ns_nop 0\nv_mul_f32 v{T+2}, v{T+2}, v{T+8}\nv_mul_f32 v{T+4}, v{T+4}, v{T+8}")
    for e in range(2):
        for i in range(0, 12, 2):
            a(f"v_pk_mul_f32 {vr(O+12*e+i,2)}, {vr(O+12*e+i,2)}, {vr(T+2+2*e,2)} op_sel_hi:[1,0]")
    for e in range(2):
        for i in range(4): a(f"v_cvt_pk_bf16_f32 v{P+4*e+i}, v{O+12*e+2*i}, v{O+12*e+2*i+1}")
        for i in range(2): a(f"v_cvt_pk_bf16_f32 v{P+8+2*e+i}, v{O+12*e+8+2*i}, v{O+12*e+9+2*i}")
    a(f"buffer_store_dwordx4 {vr(P,4)}, v{T+7}, s[52:55], s67 offen{SC}")
    a(f"buffer_store_dwordx4 {vr(P+4,4)}, v{T+7}, s[52:55], s67 offen offset:512{SC}")
    a(f"s_mov_b32 exec_hi, 0\nbuffer_store_dwordx4 {vr(P+8,4)}, v{T+6}, s[52:55], s66 offen{SC}\ns_mov_b64 exec, -1")
    stamp(a, 11)
    a("s_cmp_lg_u32 s39, 0\ns_cbranch_scc1 L_att_redo_done")
    lds_spin(a, C_BAD, 4, 6, 7, mask=0xff)
    a("s_lshr_b32 s94, s94, 8\ns_cbranch_scc0 L_att_done")
    M = A_O
    a("s_waitcnt vmcnt(0)")
    for t in range(8): a(f"v_mov_b32 v{M+t}, 0xff800000")
    a("s_mov_b32 s64, 0\ns_mov_b32 s39, 1")
    a("L_slow_loop:")
    kv_load(a, 0, "s64")
    a("s_waitcnt vmcnt(0)")
    for t in range(8):
        for m in qk(0, t, A_S): a(m)
        a.nop(16)
        for i in range(0, 16, 2): a(f"v_max3_f32 v{M+t}, v{M+t}, v{A_S+i}, v{A_S+i+1}")
    a(f"s_add_u32 s64, s64, {KT}\ns_cmp_lt_u32 s64, {16*KT}\ns_cbranch_scc1 L_slow_loop")
    a(f"v_lshlrev_b32 v{A_S}, 2, v0\ns_lshl_b32 s36, s{S_W}, 11\ns_add_u32 s36, s36, {SCR}\nv_add_u32 v{A_S}, s36, v{A_S}")
    for t in range(8):
        a(f"s_xor_b32 s36, s37, {t}\ns_lshl_b32 s36, s36, 8\nv_add_u32 v{A_S+1}, s36, v{A_S}\nds_write_b32 v{A_S+1}, v{M+t}")
    lds_arrive(a, C_ATT, 6, 7)
    lds_spin(a, C_ATT, 8, 6, 7)
    a(f"v_and_b32 v{A_S}, 31, v0\nv_lshlrev_b32 v{A_S}, 2, v{A_S}\nv_add_u32 v{A_S}, {SCR}, v{A_S}")
    for t in range(8):
        a(f"s_xor_b32 s36, s37, {t}\ns_lshl_b32 s36, s36, 8\nv_add_u32 v{A_S+1}, s36, v{A_S}")
        for w in range(4):
            a(f"ds_read2_b32 {vr(A_S+2+2*w,2)}, v{A_S+1} offset0:0 offset1:32\nv_add_u32 v{A_S+1}, 2048, v{A_S+1}")
        a("s_waitcnt lgkmcnt(0)")
        for i in range(0, 8, 2): a(f"v_max3_f32 v{M+t}, v{M+t}, v{A_S+2+i}, v{A_S+3+i}")
        m, h1, h2 = M + t, A_S + 2, A_S + 3
        a(f"v_sub_f32 v{m}, 0, v{m}\nv_and_b32 v{h1}, 0xffff0000, v{m}\nv_sub_f32 v{m}, v{m}, v{h1}\nv_and_b32 v{h2}, 0xffff0000, v{m}\nv_sub_f32 v{m}, v{m}, v{h2}")
        a(f"v_lshrrev_b32 v{h1}, 16, v{h1}\nv_or_b32 v{h1}, v{h1}, v{h2}\nv_lshrrev_b32 v{m}, 16, v{m}")
        a(f"s_mov_b32 exec_lo, 0\nv_mov_b32 v{A_Q+6*t+4}, v{h1}\nv_mov_b32 v{A_Q+6*t+5}, v{m}\ns_mov_b32 exec_lo, -1")
    a(f"s_mov_b32 exec_lo, 0\nv_mov_b32 v{A_KT}, {K_C}\ns_mov_b32 exec_lo, -1")
    lds_arrive(a, C_ATT, 6, 7)
    lds_spin(a, C_ATT, 12, 6, 7)
    a("s_setprio 1\ns_branch L_att_start")
    a("L_att_redo_done:")
    lds_arrive(a, C_ATT, 6, 7)
    lds_spin(a, C_ATT, 20, 6, 7)
    a("L_att_done:")
    hold(a, "tail")
    flag(a, "s77", 6)
    stamp(a, 12)
    final_addr(a)

def kernel():
    a = Asm()
    a(f".p2align 8\n.type {L},@function\n{L}:")
    a("s_cmp_ge_u32 s2, 256\ns_cbranch_scc1 L_end")
    if STAMP:
        a("v_mov_b32 v254, 0\nv_mov_b32 v255, 0"); stamp(a, 0)
    if E("HOLD"): a("s_memrealtime s[100:101]")
    a("s_load_dwordx16 s[4:19], s[0:1], 0\ns_load_dwordx8 s[20:27], s[0:1], 64\ns_load_dwordx4 s[28:31], s[0:1], 96")
    a(f"v_lshrrev_b32 v1, 6, v0\nv_and_b32 v0, 63, v0\nv_readfirstlane_b32 s{S_W}, v1")
    a(f"s_and_b32 s35, s2, 7\ns_lshl_b32 s{S_TB}, s35, 2\ns_bfe_u32 s36, s2, 0x20003\ns_add_u32 s{S_TB}, s{S_TB}, s36\ns_lshr_b32 s{S_HB}, s2, 5")
    a(f"v_lshlrev_b32 v1, 2, v0\nv_add_u32 v1, {CNT}, v1\nv_mov_b32 v2, 0\nds_write_b32 v1, v2")
    a(f"s_sub_u32 s37, s{S_W}, 4\ns_waitcnt lgkmcnt(0)\ns_barrier")
    srd(a, SF, P_WS, FL, FLSZ)
    hold(a, "start")
    a(f"s_cmp_lt_u32 s{S_W}, 4\ns_cbranch_scc1 L_q")
    role_rows(a)
    role_gemm(a)
    a("s_branch L_final")
    a("L_q:")
    role_q(a)
    role_att(a)
    a("L_final:")
    final(a)
    a("L_fin:"); endpgm(a)
    a("L_end:\ns_endpgm")
    return a

def build(path):
    a = kernel()
    out = open("cdna_kernels/" + NAME + ".s.ref").read().split("; Override launch")[0]
    out += f"; @launch grid=(256,1,1) block=(512,1,1) lds={LDS_BYTES}\n"
    out += f'.amdgcn_target "amdgcn-amd-amdhsa--gfx950"\n.text\n.globl {L}\n' + a.text()
    out += f""".section .rodata,"a"
.p2align 6
.amdhsa_kernel {L}
  .amdhsa_next_free_vgpr 256
  .amdhsa_next_free_sgpr 102
  .amdhsa_accum_offset 256
  .amdhsa_group_segment_fixed_size 0
  .amdhsa_kernarg_size 112
  .amdhsa_user_sgpr_count 2
  .amdhsa_user_sgpr_kernarg_segment_ptr 1
  .amdhsa_system_sgpr_workgroup_id_x 1
.end_amdhsa_kernel
"""
    bad = lint(a.l, "k")
    for m in bad: print(m)
    open(path, "w").write(out)
    print("written", path, "lint issues:", len(bad), "lines", len(a.l))

if __name__ == "__main__":
    STAMP = len(sys.argv) > 2
    build(sys.argv[1] if len(sys.argv) > 1 else "cdna_kernels/" + NAME + ".s")
```

```python
import sys, math
from asmlib import *

NAME = "gated_mix__grouped_kv_mqa__mixer_token_mlp__prompt"
HF, KF, QF, OF, GF, GV = 0, 0x280000, 0x2B0000, 0x530000, 0x7B0000, 0x9D0000
KT = 2688
K_T, K_C, V_A, V_B = 1024, 1280, 1296, 1968
P_X, P_WQ, P_WK, P_WV, P_WO, P_W1, P_B1, P_W2, P_B2, P_GW, P_OUT, P_DBG, P_WS = 4, 6, 8, 10, 12, 16, 18, 20, 22, 24, 26, 28, 30
S_W, S_TB, S_HB = 32, 33, 34
QSCALE = math.log2(math.e) / math.sqrt(20.0)
def fbits(x):
    import struct
    return "0x%08x" % struct.unpack("<I", struct.pack("<f", x))[0]

def srd(a, d, ptr, off, nbytes):
    if off == 0:
        a(f"s_mov_b32 s{d}, s{ptr}\ns_mov_b32 s{d+1}, s{ptr+1}")
    else:
        a(f"s_add_u32 s{d}, s{ptr}, {off}\ns_addc_u32 s{d+1}, s{ptr+1}, 0")
    a(f"s_mov_b32 s{d+2}, {nbytes}\ns_mov_b32 s{d+3}, 0x20000")

def head(a, label):
    a(f".p2align 8\n.type {label},@function\n{label}:")
    a(f"s_cmp_ge_u32 s2, 256\ns_cbranch_scc1 {label}_end")
    if STAMP:
        for i in range(76, 92): a(f"s_mov_b32 s{i}, 0")
        stamp(a, 0)
    a("s_load_dwordx16 s[4:19], s[0:1], 0\ns_load_dwordx8 s[20:27], s[0:1], 64\ns_load_dwordx4 s[28:31], s[0:1], 96")
    a(f"v_lshrrev_b32 v1, 6, v0\nv_and_b32 v0, 63, v0\nv_readfirstlane_b32 s{S_W}, v1")
    a(f"s_and_b32 s35, s2, 7\ns_lshl_b32 s{S_TB}, s35, 2\ns_bfe_u32 s36, s2, 0x20003\ns_add_u32 s{S_TB}, s{S_TB}, s36\ns_lshr_b32 s{S_HB}, s2, 5")

STAMP = False
ST = 0xA00000
def stamp(a, i):
    if not STAMP: return
    a(f"s_memrealtime s[98:99]\ns_memtime s[100:101]\ns_waitcnt lgkmcnt(0)\ns_mov_b32 s{76+2*i}, s98\ns_mov_b32 s{77+2*i}, s100"); a.lg = []
def endpgm(a, kid):
    if STAMP:
        a("s_waitcnt vmcnt(0)"); stamp(a, 7)
        a(f"s_mov_b64 exec, 1\ns_lshl_b32 s98, s2, 3\ns_add_u32 s98, s98, s{S_W}\ns_lshl_b32 s98, s98, 6\ns_add_u32 s98, s98, {ST + kid*0x20000}\nv_mov_b32 v1, s98")
        for i in range(16): a(f"v_mov_b32 v{2+i}, s{76+i}")
        for i in range(4): a(f"global_store_dwordx4 v1, v[{2+4*i}:{5+4*i}], s[{P_WS}:{P_WS+1}] offset:{16*i}")
    a("s_endpgm")

def desc(label, nv):
    return f""".p2align 6
.amdhsa_kernel {label}
  .amdhsa_next_free_vgpr {nv}
  .amdhsa_next_free_sgpr 102
  .amdhsa_accum_offset {nv}
  .amdhsa_group_segment_fixed_size 0
  .amdhsa_kernarg_size 112
  .amdhsa_user_sgpr_count 2
  .amdhsa_user_sgpr_kernarg_segment_ptr 1
  .amdhsa_system_sgpr_workgroup_id_x 1
.end_amdhsa_kernel
"""

def wave_sum(a, rs):
    steps = ["quad_perm:[1,0,3,2] row_mask:0xf", "quad_perm:[2,3,0,1] row_mask:0xf", "row_half_mirror row_mask:0xf",
             "row_mirror row_mask:0xf", "row_bcast:15 row_mask:0xa", "row_bcast:31 row_mask:0xc"]
    for st in steps:
        a.nop(max(0, 2 - (len(rs) - 1)) if st != steps[0] else 2)
        for r in rs:
            a(f"v_add_f32_dpp v{r}, v{r}, v{r} {st} bank_mask:0xf")

def w160_patterns(a, vt, outs):
    for i in range(5):
        a(f"v_add_u32 v{vt}, {64*i}, v0")
        a(f"v_mul_u32_u24 v{vt+1}, 205, v{vt}\nv_lshrrev_b32 v{vt+1}, 11, v{vt+1}")
        a(f"v_mul_u32_u24 v{vt+2}, 10, v{vt+1}\nv_sub_u32 v{vt+2}, v{vt}, v{vt+2}\nv_lshlrev_b32 v{vt+2}, 4, v{vt+2}")
        outs(i, vt + 1, vt + 2)

def tr160_addr(a, vd, vt):
    a(f"v_lshrrev_b32 v{vt}, 5, v0\nv_lshlrev_b32 v{vt}, 4, v{vt}")
    a(f"v_bfe_u32 v{vd}, v0, 2, 3\nv_add_u32 v{vt}, v{vt}, v{vd}")
    a(f"v_mul_u32_u24 v{vt}, 160, v{vt}\nv_and_b32 v{vd}, 3, v0\nv_lshl_add_u32 v{vd}, v{vd}, 3, v{vt}")

def k_pre():
    L = "pre_kernel"
    a = Asm(); head(a, L)
    WQ, WKV, HROW, GSL = 0, 102400, 131072, 131072 + 8 * 1344
    XF = 64
    a(f"s_lshl_b32 s35, s{S_TB}, 6\ns_lshr_b32 s36, s{S_HB}, 2\ns_lshl_b32 s36, s36, 5\ns_add_u32 s37, s35, s36")
    a(f"s_and_b32 s36, s{S_HB}, 3\ns_lshl_b32 s36, s36, 2\ns_add_u32 s37, s37, s36")
    a(f"s_and_b32 s36, s{S_W}, 3\ns_add_u32 s38, s37, s36\ns_lshr_b32 s36, s{S_W}, 2\ns_lshl_b32 s36, s36, 4\ns_add_u32 s38, s38, s36")
    a("s_mul_i32 s39, s38, 1280")
    a("v_lshlrev_b32 v1, 2, v0")
    a("v_lshlrev_b32 v22, 4, v0")
    a("v_and_b32 v23, 15, v0\nv_mul_u32_u24 v23, 1280, v23\nv_lshrrev_b32 v24, 4, v0\nv_lshl_add_u32 v23, v24, 4, v23")
    a("s_waitcnt lgkmcnt(0)")
    srd(a, 40, P_X, 0, 2048 * 1280)
    srd(a, 44, P_GW, 0, 1280)
    for j in range(5):
        a(f"buffer_load_dword v{2+j}, v1, s[40:43], s39 offen offset:{256*j}")
    for j in range(5):
        a(f"buffer_load_dword v{7+j}, v1, s[44:47], 0 offen offset:{256*j}")
    a(f"s_cmp_lt_u32 s{S_W}, 4\ns_cbranch_scc1 {L}_ldq")
    a(f"s_and_b32 s36, s{S_HB}, 1\ns_cmp_eq_u32 s36, 0\ns_cselect_b32 s48, s{P_WK}, s{P_WV}\ns_cselect_b32 s49, s{P_WK+1}, s{P_WV+1}")
    a("s_mov_b32 s50, 25600\ns_mov_b32 s51, 0x20000")
    a(f"s_sub_u32 s36, s{S_W}, 4\ns_lshl_b32 s36, s36, 10")
    for i in range(7):
        a(f"s_add_u32 m0, s36, {WKV}\ns_nop 0")
        a(f"buffer_load_dwordx4 v22, s[48:51], s36 offen lds")
        if i < 6: a("s_add_u32 s36, s36, 4096")
    a(f"s_cmp_ge_u32 s{S_W}, 6\ns_cbranch_scc1 {L}_ldh")
    a(f"s_lshr_b32 s36, s{S_HB}, 1\ns_lshl_b32 s36, s36, 4\ns_add_u32 s64, s35, s36\ns_mul_i32 s36, s64, 1280")
    for ks in range(20):
        a(f"buffer_load_dwordx4 {vr(XF+4*ks,4)}, v23, s[40:43], s36 offen offset:{64*ks}")
    a(f"s_waitcnt vmcnt(27)\ns_branch {L}_ln")
    a(f"{L}_ldh:\ns_waitcnt vmcnt(7)\ns_branch {L}_ln")
    a(f"{L}_ldq:")
    srd(a, 48, P_WQ, 0, 640 * 1280)
    a(f"s_mul_i32 s65, s{S_HB}, 160")
    def outs(i, vrho, vc):
        a(f"v_lshrrev_b32 v33, 1, v{vrho}\nv_xor_b32 v33, v33, v{vrho}\nv_and_b32 v33, 4, v33\nv_mul_u32_u24 v33, 3, v33\nv_xor_b32 v33, v33, v{vrho}")
        a(f"v_mul_u32_u24 v33, 1280, v33\nv_add3_u32 v{25+i}, v33, v{vc}, s65")
    w160_patterns(a, 30, outs)
    a(f"s_lshl_b32 s36, s{S_W}, 4\ns_add_u32 s36, s35, s36\ns_mul_i32 s36, s36, 1280")
    a(f"s_mul_i32 s66, s{S_W}, 40960\ns_mul_i32 s67, s{S_W}, 5120")
    for c in range(5):
        for i in range(5):
            a(f"s_add_u32 m0, s67, {WQ + c*20480 + i*1024}\ns_nop 0")
            a(f"buffer_load_dwordx4 v{25+i}, s[48:51], s66 offen lds")
        for ks in range(4 * c, 4 * c + 4):
            a(f"buffer_load_dwordx4 {vr(XF+4*ks,4)}, v23, s[40:43], s36 offen offset:{64*ks}")
        if c < 4: a(f"s_add_u32 s66, s66, {4*40960}")
    a("s_waitcnt vmcnt(45)")
    a(f"{L}_ln:"); stamp(a, 1)
    X, T = 12, 36
    for j in range(5):
        a(f"v_lshlrev_b32 v{X+2*j}, 16, v{2+j}\nv_and_b32 v{X+2*j+1}, 0xffff0000, v{2+j}")
    for j in range(5):
        a(f"v_lshlrev_b32 v{T+2*j}, 16, v{7+j}\nv_and_b32 v{T+2*j+1}, 0xffff0000, v{7+j}")
    for j in range(5):
        a(f"v_pk_mul_f32 {vr(T+2*j,2)}, {vr(T+2*j,2)}, {vr(X+2*j,2)}")
    for j in range(5):
        a(f"v_cvt_pk_bf16_f32 v{7+j}, v{T+2*j}, v{T+2*j+1}")
    for j in range(5):
        a(f"v_lshlrev_b32 v{T+2*j}, 16, v{7+j}\nv_and_b32 v{T+2*j+1}, 0xffff0000, v{7+j}")
    a(f"v_pk_add_f32 v[46:47], {vr(X,2)}, {vr(X+2,2)}\nv_pk_add_f32 v[48:49], {vr(T,2)}, {vr(T+2,2)}")
    for j in range(2, 5):
        a(f"v_pk_add_f32 v[46:47], v[46:47], {vr(X+2*j,2)}\nv_pk_add_f32 v[48:49], v[48:49], {vr(T+2*j,2)}")
    a("v_add_f32 v46, v46, v47\nv_add_f32 v48, v48, v49")
    wave_sum(a, [46, 48])
    a("s_nop 0\nv_readlane_b32 s68, v46, 63\nv_readlane_b32 s69, v48, 63")
    a(f"v_mov_b32 v50, {fbits(1.0/640)}\ns_nop 0\nv_mul_f32 v46, s68, v50")
    for j in range(5):
        a(f"v_pk_add_f32 {vr(T+2*j,2)}, {vr(X+2*j,2)}, v[46:47] op_sel_hi:[1,0] neg_lo:[0,1] neg_hi:[0,1]")
    a(f"v_pk_mul_f32 v[48:49], {vr(T,2)}, {vr(T,2)}")
    for j in range(1, 5):
        a(f"v_pk_fma_f32 v[48:49], {vr(T+2*j,2)}, {vr(T+2*j,2)}, v[48:49]")
    a("v_add_f32 v48, v48, v49")
    a("v_cvt_pk_bf16_f32 v52, v46, s69\nv_lshlrev_b32 v46, 16, v52\nv_and_b32 v53, 0xffff0000, v52")
    wave_sum(a, [48])
    for j in range(5):
        a(f"v_pk_add_f32 {vr(T+2*j,2)}, {vr(X+2*j,2)}, v[46:47] op_sel_hi:[1,0] neg_lo:[0,1] neg_hi:[0,1]")
    a("v_readlane_b32 s68, v48, 63")
    for j in range(5):
        a(f"v_cvt_pk_bf16_f32 v{2+j}, v{T+2*j}, v{T+2*j+1}")
    a("v_mul_f32 v48, s68, v50")
    a(f"v_mul_f32 v53, {fbits(-math.log2(math.e))}, v53")
    a("v_cvt_pk_bf16_f32 v48, v48, v48\nv_exp_f32 v53, v53\nv_lshlrev_b32 v48, 16, v48")
    a(f"v_add_f32 v48, {fbits(1e-5)}, v48\nv_add_f32 v53, 1.0, v53")
    a("v_cvt_pk_bf16_f32 v48, v48, v48\nv_rcp_f32 v53, v53\nv_lshlrev_b32 v48, 16, v48\nv_sqrt_f32 v48, v48")
    a("v_cvt_pk_bf16_f32 v54, v53, v53\nv_cvt_pk_bf16_f32 v48, v48, v48\nv_lshlrev_b32 v54, 16, v54\nv_lshlrev_b32 v48, 16, v48")
    a("v_rcp_f32 v48, v48\nv_sub_f32 v55, 1.0, v54\nv_cvt_pk_bf16_f32 v55, v55, v55\nv_lshlrev_b32 v55, 16, v55")
    for j in range(5):
        a(f"v_lshlrev_b32 v{T+2*j}, 16, v{2+j}\nv_and_b32 v{T+2*j+1}, 0xffff0000, v{2+j}")
    for j in range(5):
        a(f"v_pk_mul_f32 {vr(T+2*j,2)}, {vr(T+2*j,2)}, v[48:49] op_sel_hi:[1,0]")
    for j in range(5):
        a(f"v_cvt_pk_bf16_f32 v{2+j}, v{T+2*j}, v{T+2*j+1}")
    a(f"s_mul_i32 s36, s{S_W}, 1344\ns_add_u32 s36, s36, {HROW}\nv_add_u32 v46, s36, v1")
    for j in range(5):
        a(f"ds_write_b32 v46, v{2+j} offset:{256*j}")
    a(f"s_lshl_b32 s36, s{S_W}, 3\ns_add_u32 s36, s36, {GSL}\nv_mov_b32 v47, s36\nds_write_b64 v47, v[54:55]")
    a(f"s_cmp_lt_u32 s{S_W}, 4\ns_cbranch_scc1 {L}_q")
    stamp(a, 2); a("s_waitcnt vmcnt(0) lgkmcnt(0)\ns_barrier"); stamp(a, 3)
    a(f"s_cmp_lt_u32 s{S_W}, 6\ns_cbranch_scc1 {L}_kv")
    srd(a, 52, P_WS, HF, 64 * 40960)
    a(f"v_bfe_u32 v2, v0, 2, 2\nv_mul_u32_u24 v2, 1344, v2\nv_lshrrev_b32 v3, 4, v0\nv_lshl_add_u32 v2, v3, 5, v2\nv_and_b32 v4, 3, v0\nv_lshl_add_u32 v2, v4, 3, v2")
    a(f"s_sub_u32 s36, s{S_W}, 6\ns_mul_i32 s64, s36, 640\ns_add_u32 s64, s64, {HROW}\nv_add_u32 v2, s64, v2")
    for u in range(5):
        a(f"ds_read_b64_tr_b16 {vr(64+4*u,2)}, v2 offset:{128*u}\nds_read_b64_tr_b16 {vr(66+4*u,2)}, v2 offset:{128*u + 4*1344}")
    a("v_and_b32 v4, 15, v0\nv_lshlrev_b32 v4, 4, v4\nv_lshl_add_u32 v4, v3, 10, v4")
    a(f"s_lshr_b32 s64, s37, 5\ns_mul_i32 s64, s64, 40960\ns_and_b32 s65, s{S_HB}, 3\ns_lshl_b32 s65, s65, 8\ns_add_u32 s64, s64, s65")
    a(f"s_mul_i32 s36, s36, 20480\ns_add_u32 s64, s64, s36")
    a(f"v_and_b32 v5, 7, v0\nv_lshlrev_b32 v6, 3, v5\nv_add_u32 v6, {GSL}, v6\nds_read_b64 v[8:9], v6")
    for u in range(5):
        a(f"s_waitcnt lgkmcnt({9-2*u})")
        a(f"buffer_store_dwordx4 {vr(64+4*u,4)}, v4, s[52:55], s64 offen")
        if u < 4: a("s_add_u32 s64, s64, 4096")
    srd(a, 56, P_WS, GV, 2048 * 8)
    a("v_and_b32 v6, 3, v5\nv_lshrrev_b32 v5, 2, v5\nv_lshl_add_u32 v6, v5, 4, v6\nv_add_u32 v6, s37, v6\nv_lshlrev_b32 v6, 3, v6")
    a("s_mov_b64 exec, 0xff\ns_waitcnt lgkmcnt(0)\nbuffer_store_dwordx2 v[8:9], v6, s[56:59], 0 offen")
    a(f"s_branch {L}_fin")
    a(f"{L}_kv:")
    srd(a, 52, P_WS, KF, 64 * KT)
    a("v_lshrrev_b32 v3, 4, v0\nv_lshlrev_b32 v2, 3, v3\nv_bfe_u32 v4, v0, 2, 2\nv_add_u32 v2, v2, v4\nv_mul_u32_u24 v2, 40, v2")
    a(f"v_and_b32 v4, 3, v0\nv_lshlrev_b32 v4, 3, v4\ns_cmp_eq_u32 s{S_W}, 5\ns_cselect_b64 vcc, -1, 0\nv_cndmask_b32 v4, v4, 32, vcc".replace("v4, v4, 32, vcc", "v4, v4, v5, vcc").replace("s_cmp_eq", "v_mov_b32 v5, 32\ns_cmp_eq"))
    a(f"v_add_u32 v2, v2, v4\nv_add_u32 v2, {WKV}, v2")
    a("v_and_b32 v6, 15, v0")
    a(f"s_lshr_b32 s65, s64, 5\ns_mul_i32 s65, s65, {KT}\ns_bfe_u32 s66, s64, 0x10004")
    WF = 144
    def kvchain(isv):
        def rd(ks):
            b = WF + 4 * (ks % 6)
            a(f"ds_read_b64_tr_b16 {vr(b,2)}, v2 offset:{1280*ks}\nds_read_b64_tr_b16 {vr(b+2,2)}, v2 offset:{1280*ks+160}")
        for ks in range(5): rd(ks)
        for ks in range(20):
            if ks + 5 < 20: rd(ks + 5)
            left = min(19, ks + 5) - ks
            a(f"s_waitcnt lgkmcnt({2*left})")
            w = vr(WF + 4 * (ks % 6), 4); x = vr(XF + 4 * ks, 4)
            acc = 8 + 4 * (ks & 1)
            c = "0" if ks < 2 else vr(acc, 4)
            a(f"v_mfma_f32_16x16x32_bf16 {vr(acc,4)}, {x if isv else w}, {w if isv else x}, {c}")
        a.nop(8)
        a("v_pk_add_f32 v[8:9], v[8:9], v[12:13]\nv_pk_add_f32 v[10:11], v[10:11], v[14:15]")
        a("v_cvt_pk_bf16_f32 v8, v8, v9\nv_cvt_pk_bf16_f32 v9, v10, v11")
    a(f"s_and_b32 s36, s{S_HB}, 1\ns_cbranch_scc1 {L}_v")
    kvchain(False)
    a("s_lshl_b32 s66, s66, 4\nv_add_u32 v6, s66, v6")
    a(f"s_cmp_eq_u32 s{S_W}, 5\ns_cbranch_scc1 {L}_kt")
    a("v_lshrrev_b32 v4, 1, v3\nv_lshlrev_b32 v4, 9, v4\nv_lshl_add_u32 v4, v6, 4, v4\nv_and_b32 v5, 1, v3\nv_lshl_add_u32 v4, v5, 3, v4")
    a("buffer_store_dwordx2 v[8:9], v4, s[52:55], s65 offen"); a(f"s_branch {L}_fin")
    a(f"{L}_kt:")
    a(f"v_lshlrev_b32 v4, 3, v6\nv_add_u32 v4, {K_T}, v4\ns_mov_b64 exec, 0x10000\nv_mov_b32 v4, {K_C}\nv_mov_b32 v8, 0x3f803f80\nv_mov_b32 v9, 0x00003f80")
    a("s_mov_b64 exec, 0x1ffff\nbuffer_store_dwordx2 v[8:9], v4, s[52:55], s65 offen"); a(f"s_branch {L}_fin")
    a(f"{L}_v:")
    kvchain(True)
    a(f"s_mul_i32 s66, s66, 672\ns_add_u32 s65, s65, s66\ns_add_u32 s65, s65, {V_A}")
    a("v_lshrrev_b32 v4, 1, v3\nv_mul_u32_u24 v4, 336, v4\nv_lshl_add_u32 v4, v6, 4, v4\nv_and_b32 v5, 1, v3\nv_lshl_add_u32 v4, v5, 3, v4")
    a(f"s_cmp_eq_u32 s{S_W}, 5\ns_cbranch_scc1 {L}_vt")
    a("buffer_store_dwordx2 v[8:9], v4, s[52:55], s65 offen"); a(f"s_branch {L}_fin")
    a(f"{L}_vt:")
    a("s_mov_b32 exec_lo, 0x00100010\ns_mov_b32 exec_hi, 0x00100010\nv_mov_b32 v8, 0x3f803f80\nv_mov_b32 v9, 0x3f803f80")
    a("s_mov_b32 exec_lo, 0x001f001f\ns_mov_b32 exec_hi, 0x001f001f\nbuffer_store_dwordx2 v[8:9], v4, s[52:55], s65 offen offset:256"); a(f"s_branch {L}_fin")
    a(f"{L}_q:")
    stamp(a, 2); a("s_waitcnt lgkmcnt(0)\ns_barrier"); stamp(a, 3)
    tr160_addr(a, 2, 3)
    a("v_add_u32 v3, 51200, v2")
    WB, ACC = 144, 184
    def rdq(ks):
        for b in range(5):
            r = WB + 20 * (ks & 1) + 4 * b
            ad, off = (2, ks * 5120) if ks < 10 else (3, (ks - 10) * 5120)
            a.ds(f"ds_read_b64_tr_b16 {vr(r,2)}, v{ad} offset:{off + 32*b}", ("w", ks, b))
            a.ds(f"ds_read_b64_tr_b16 {vr(r+2,2)}, v{ad} offset:{off + 32*b + 1280}", ("w", ks, b))
    for c in range(5):
        a(f"s_waitcnt vmcnt({9*(4-c)})\ns_barrier")
        if c in (0, 4): stamp(a, 4 + c // 4)
        rdq(4 * c)
        for ks in range(4 * c, 4 * c + 4):
            a.wait(lg="all")
            if ks < 4 * c + 3: rdq(ks + 1)
            for b in range(5):
                cc = "0" if ks == 0 else vr(ACC + 4 * b, 4)
                a(f"v_mfma_f32_16x16x32_bf16 {vr(ACC+4*b,4)}, {vr(WB+20*(ks&1)+4*b,4)}, {vr(XF+4*ks,4)}, {cc}")
    stamp(a, 6)
    srd(a, 52, P_WS, QF, 256 * 10240)
    a(f"s_mul_i32 s64, s2, 10240\ns_lshr_b32 s36, s{S_W}, 1\ns_mul_i32 s36, s36, 5120\ns_add_u32 s64, s64, s36")
    a(f"s_and_b32 s36, s{S_W}, 1\ns_lshl_b32 s36, s36, 4\nv_and_b32 v4, 15, v0\nv_add_u32 v4, s36, v4\nv_lshrrev_b32 v5, 4, v0")
    a(f"s_mov_b32 s66, {fbits(QSCALE)}\ns_mov_b32 s67, s66")
    for b in range(5):
        a(f"v_add_u32 v6, {4*b}, v5\nv_mul_u32_u24 v7, 52, v6\nv_lshrrev_b32 v7, 8, v7\nv_mul_u32_u24 v8, 5, v7\nv_sub_u32 v8, v6, v8")
        a("v_mul_u32_u24 v7, 1280, v7\nv_lshrrev_b32 v9, 1, v8\nv_lshl_add_u32 v7, v9, 9, v7\nv_and_b32 v9, 1, v8\nv_lshl_add_u32 v7, v9, 3, v7")
        a(f"v_lshrrev_b32 v9, 2, v8\nv_sub_u32 v9, 4, v9\nv_lshl_add_u32 v{10+b}, v4, v9, v7")
    for b in range(5):
        r = ACC + 4 * b
        a(f"v_pk_mul_f32 {vr(r,2)}, {vr(r,2)}, s[66:67]\nv_pk_mul_f32 {vr(r+2,2)}, {vr(r+2,2)}, s[66:67]")
        a(f"v_cvt_pk_bf16_f32 v{r}, v{r}, v{r+1}\nv_cvt_pk_bf16_f32 v{r+1}, v{r+2}, v{r+3}")
        a(f"buffer_store_dwordx2 {vr(r,2)}, v{10+b}, s[52:55], s64 offen")
    a(f"{L}_fin:"); endpgm(a, 0); a(f"{L}_end:\ns_endpgm")
    return a, L, 256, GSL + 64

RING, SCR, CNT = 0, 65536, 147456
LDS_MAIN = CNT + 256
C_G1A, C_G1B, C_ATT, C_BAD, C_MAX = CNT, CNT + 4, CNT + 8, CNT + 12, CNT + 16
_uid = [0]
def lds_arrive(a, cnt, va, vt):
    a(f"v_mov_b32 v{va}, {cnt}\nv_mov_b32 v{vt}, 1\ns_waitcnt lgkmcnt(0)\ns_mov_b64 exec, 1\nds_add_u32 v{va}, v{vt}\ns_mov_b64 exec, -1")
    a.lg = []
def lds_spin(a, cnt, target, va, vt, sleep=0):
    _uid[0] += 1; u = _uid[0]
    a(f"v_mov_b32 v{va}, {cnt}\ns_mov_b32 s95, 0x40000")
    a(f"L_spin{u}:\nds_read_b32 v{vt}, v{va}\ns_waitcnt lgkmcnt(0)\nv_readfirstlane_b32 s94, v{vt}\ns_nop 0\ns_cmp_ge_u32 s94, {target}\ns_cbranch_scc1 L_spun{u}")
    if sleep: a(f"s_sleep {sleep}")
    a(f"s_sub_u32 s95, s95, 1\ns_cbranch_scc0 L_spin{u}\nL_spun{u}:")
    a.lg = []

G_DMA, G_TR, G_ACT, G_ACC, G_AR, G_W = 1, 5, 9, 16, 96, 176
D = 4
def gemm_addr(a, sgw):
    a(f"v_lshrrev_b32 v11, 2, v0")
    a(f"v_lshlrev_b32 v12, 7, v11\nv_and_b32 v13, 3, v0\nv_lshl_add_u32 v12, v13, 3, v12\ns_lshl_b32 s36, s{sgw}, 14\nv_add_u32 v12, s36, v12")
    a(f"v_bfe_u32 v13, v0, 3, 2")
    for cb in range(4):
        a(f"v_xor_b32 v14, {cb}, v13\nv_lshl_add_u32 v{G_TR+cb}, v14, 5, v12")
    a(f"v_lshlrev_b32 v{G_ACT}, 4, v0\nv_add_u32 v{G_ACT+1}, 4096, v{G_ACT}")
def gemm_dma_addr(a, stride):
    a(f"v_lshrrev_b32 v11, 3, v0\nv_bfe_u32 v12, v0, 4, 2\nv_lshlrev_b32 v12, 1, v12\nv_and_b32 v13, 7, v0\nv_xor_b32 v12, v12, v13")
    a(f"v_mul_u32_u24 v11, {stride}, v11\nv_lshl_add_u32 v{G_DMA}, v12, 4, v11")
    for i in range(1, 4):
        a(f"v_add_u32 v{G_DMA+i}, {i*(8*stride-1024)}, v{G_DMA}")

class Gemm:
    def __init__(self, a, name, nsteps, wsrd, asrd, s_w, s_a, s_m0, wstep, astep, w_is_a, amods=""):
        self.__dict__.update(locals())
    def dma(self, s):
        a = self.a
        a(f"s_add_u32 m0, s{self.s_m0}, {(s % D)*4096}")
        if s > 0: a(f"s_add_u32 s{self.s_w}, s{self.s_w}, {self.wstep}")
        else: a("s_nop 0")
        for i in range(4):
            a.vmem(f"buffer_load_dwordx4 v{G_DMA+i}, {sr(self.wsrd,4)}, s{self.s_w} offen offset:{1024*i} lds", (self.name, "w", s))
    def act(self, s, b):
        a = self.a
        if b == 0 and s > 0: a(f"s_add_u32 s{self.s_a}, s{self.s_a}, {self.astep}")
        r = G_AR + 20 * (s % D) + 4 * b
        ad, off = (G_ACT, 1024 * b) if b < 4 else (G_ACT + 1, 0)
        a.vmem(f"buffer_load_dwordx4 {vr(r,4)}, v{ad}, {sr(self.asrd,4)}, s{self.s_a} offen offset:{off}{self.amods}", (self.name, "a", s))
    def rd(self, s, cb):
        a = self.a
        r = G_W + 16 * (s & 1) + 4 * cb
        a.ds(f"ds_read_b64_tr_b16 {vr(r,2)}, v{G_TR+cb} offset:{(s % D)*4096}", (self.name, s))
        a.ds(f"ds_read_b64_tr_b16 {vr(r+2,2)}, v{G_TR+cb} offset:{(s % D)*4096 + 2048}", (self.name, s))
    def pro_w(self):
        for s in range(D): self.dma(s)
    def pro_a(self):
        for s in range(D):
            for b in range(5): self.act(s, b)
    def pro_both(self):
        for s in range(D):
            self.dma(s)
            for b in range(5): self.act(s, b)
    def run(self, after_last_read=None):
        a = self.a; n = self.nsteps
        a.wait(vm=(self.name, "w", 0))
        stamp(a, 1)
        for cb in range(4): self.rd(0, cb)
        for s in range(n):
            need = [(self.name, "a", s)] + ([(self.name, "w", s + 1)] if s + 1 < n else [])
            a.wait(vm=need, lg=(self.name, s))
            if s + D < n: self.dma(s + D)
            if s == n - 1 and after_last_read: after_last_read()
            for b in range(5):
                for cb in range(4):
                    acc = vr(G_ACC + 4 * (4 * b + cb), 4)
                    w = vr(G_W + 16 * (s & 1) + 4 * cb, 4); x = vr(G_AR + 20 * (s % D) + 4 * b, 4)
                    a(f"v_mfma_f32_16x16x32_bf16 {acc}, {w if self.w_is_a else x}, {x if self.w_is_a else w}, {'0' if s == 0 else acc}")
                    if cb == 1 and b < 4 and s + 1 < n: self.rd(s + 1, b)
                if s + D < n: self.act(s + D, b)

def gelu8(a, r, t):
    for j in range(0, 8, 2): a(f"v_pk_mul_f32 {vr(t+j,2)}, {vr(r+j,2)}, {vr(r+j,2)}")
    for j in range(0, 8, 2): a(f"v_pk_fma_f32 {vr(t+j,2)}, {vr(t+j,2)}, s[70:71], v[14:15]")
    for j in range(0, 8, 2): a(f"v_pk_mul_f32 {vr(t+j,2)}, {vr(t+j,2)}, {vr(r+j,2)}")
    for j in range(8): a(f"v_exp_f32 v{t+j}, v{t+j}")
    for j in range(0, 8, 2): a(f"v_pk_add_f32 {vr(t+j,2)}, {vr(t+j,2)}, 1.0 op_sel_hi:[1,0]")
    for j in range(8): a(f"v_rcp_f32 v{t+j}, v{t+j}")
    for j in range(0, 8, 2): a(f"v_pk_mul_f32 {vr(r+j,2)}, {vr(r+j,2)}, {vr(t+j,2)}")

def gemm1(a, L, smods=""):
    a(f"s_and_b32 s35, s2, 7\ns_lshr_b32 s36, s2, 3")
    a("s_and_b32 s64, s35, 1\ns_lshl_b32 s64, s64, 2\ns_and_b32 s65, s36, 3\ns_add_u32 s64, s64, s65")
    a("s_lshr_b32 s65, s35, 1\ns_mul_i32 s65, s65, 7\ns_lshr_b32 s36, s36, 2\ns_add_u32 s65, s65, s36")
    a(f"s_cmp_ge_u32 s36, 7\ns_cbranch_scc1 {L}_nog1\ns_cmp_ge_u32 s65, 27\ns_cbranch_scc1 {L}_nog1")
    if NOG1: a(f"s_branch {L}_nog1")
    srd(a, 40, P_W1, 0, 2048 * 3456)
    srd(a, 44, P_WS, HF, 64 * 40960)
    srd(a, 48, P_B1, 0, 3456)
    gemm_dma_addr(a, 3456)
    a(f"s_mul_i32 s66, s37, {32*3456}\ns_lshl_b32 s36, s65, 7\ns_add_u32 s66, s66, s36")
    a(f"s_mul_i32 s67, s37, 40960\ns_mul_i32 s36, s64, 5120\ns_add_u32 s67, s67, s36")
    g = Gemm(a, "g1", 16, 40, 44, 66, 67, 38, 4 * 32 * 3456, 4 * 40960, True)
    a("s_and_b32 s36, s37, 1\ns_lshl_b32 s36, s36, 6\ns_lshl_b32 s68, s65, 7\ns_add_u32 s68, s68, s36\nv_lshrrev_b32 v11, 4, v0\nv_lshlrev_b32 v11, 3, v11")
    a.vmem("buffer_load_dwordx2 v[208:209], v11, s[48:51], s68 offen", "b1")
    a.vmem("buffer_load_dwordx2 v[210:211], v11, s[48:51], s68 offen offset:32", "b1")
    g.pro_both()
    g.run()
    stamp(a, 2)
    a(f"s_mul_i32 s36, s37, 20480\ns_add_u32 s36, s36, {SCR}\nv_add_u32 v11, s36, v{G_ACT}")
    for j in range(4):
        a(f"v_lshlrev_b32 v{212+2*j}, 16, v{208+j}\nv_and_b32 v{213+2*j}, 0xffff0000, v{208+j}")
    for blk in range(20):
        a.ds(f"ds_write_b128 v11, {vr(G_ACC+4*blk,4)} offset:{1024*blk}")
    lds_arrive(a, C_G1A, 12, 13)
    k = 2.0 * math.sqrt(2.0 / math.pi) * math.log2(math.e)
    a(f"s_mov_b32 s70, {fbits(-k*0.044715)}\ns_mov_b32 s71, s70\nv_mov_b32 v14, {fbits(-k)}\nv_mov_b32 v15, v14")
    srd(a, 52, P_WS, GF, 54 * 40960)
    a(f"s_lshl_b32 s36, s37, 11\ns_add_u32 s36, s36, {SCR}\nv_add_u32 v11, s36, v{G_ACT}\nv_add_u32 v220, 40960, v11")
    a("s_lshl_b32 s69, s65, 1\ns_and_b32 s36, s37, 1\ns_add_u32 s69, s69, s36\ns_mul_i32 s69, s69, 40960")
    a("s_mul_i32 s36, s64, 5120\ns_add_u32 s69, s69, s36\ns_lshr_b32 s36, s37, 1\ns_lshl_b32 s36, s36, 10\ns_add_u32 s69, s69, s36")
    lds_spin(a, C_G1A, 4, 12, 13, sleep=1)
    stamp(a, 3)
    R = 16
    def rdu(r):
        for src in range(4):
            for e in range(2):
                ad = 11 if src < 2 else 220
                a.ds(f"ds_read_b128 {vr(R+32*r+8*src+4*e,4)}, v{ad} offset:{(src&1)*20480 + 8192*r + 1024*e}", ("u", r))
    def fin(r):
        b = R + 32 * r
        for j in range(0, 8, 2):
            a(f"v_pk_add_f32 {vr(b+j,2)}, {vr(b+j,2)}, {vr(b+8+j,2)}\nv_pk_add_f32 {vr(b+16+j,2)}, {vr(b+16+j,2)}, {vr(b+24+j,2)}")
        for j in range(0, 8, 2):
            a(f"v_pk_add_f32 {vr(b+j,2)}, {vr(b+j,2)}, {vr(212+j,2)}")
        for j in range(0, 8, 2):
            a(f"v_pk_add_f32 {vr(b+j,2)}, {vr(b+j,2)}, {vr(b+16+j,2)}")
        gelu8(a, b, b + 8)
        for j in range(4):
            a(f"v_cvt_pk_bf16_f32 v{b+j}, v{b+2*j}, v{b+2*j+1}")
        a.vmem(f"buffer_store_dwordx4 {vr(b,4)}, v{G_ACT + (r>>1)}, s[52:55], s69 offen offset:{2048*(r&1)}{smods}", "gst")
    rdu(0); a.wait(lg="all"); rdu(1)
    fin(0)
    a.wait(lg="all")
    a(f"s_cmp_ge_u32 s37, 2\ns_cbranch_scc1 {L}_g1two")
    rdu(2); a.wait(lg="all"); fin(2)
    a(f"{L}_g1two:")
    lds_arrive(a, C_G1B, 12, 13)
    fin(1)
    a(f"s_branch {L}_g1done\n{L}_nog1:")
    lds_arrive(a, C_G1B, 12, 13)
    a(f"{L}_g1done:")

A_IDX, A_K0, A_KT, A_V, A_G = 1, 2, 3, 4, 5
A_Q, A_S, A_KV, A_O, NBUF = 8, 56, 88, 144, 4
import os
GAPS = tuple(int(c) for c in os.environ.get('GAPS', '22363'))
NOKV = os.environ.get('NOKV')
NOG1 = os.environ.get('NOG1')
def kv_load(a, buf, soff):
    b = A_KV + 14 * buf
    a(f"buffer_load_dwordx4 {vr(b,4)}, v{A_K0}, s[40:43], {soff} offen")
    a(f"buffer_load_dwordx2 {vr(b+4,2)}, v{A_KT}, s[40:43], {soff} offen")
    a(f"buffer_load_dwordx4 {vr(b+6,4)}, v{A_V}, s[40:43], {soff} offen offset:{V_A}")
    a(f"buffer_load_dwordx4 {vr(b+10,4)}, v{A_V}, s[40:43], {soff} offen offset:{V_B}")
def qk(buf, t, s):
    b = A_KV + 14 * buf
    return (f"v_mfma_f32_32x32x16_bf16 {vr(s,16)}, {vr(b,4)}, {vr(A_Q+6*t,4)}, 0",
            f"v_mfma_f32_32x32x8_bf16 {vr(s,16)}, {vr(b+4,2)}, {vr(A_Q+6*t+4,2)}, {vr(s,16)}")
def pv(buf, t, s, e):
    b = A_KV + 14 * buf
    return f"v_smfmac_f32_32x32x32_bf16 {vr(A_O+12*t,16)}, {vr(b+6+4*e,4)}, {vr(s+8*e,8)}, v{A_IDX}"
def period(a, j, t, last=False, extra=None):
    cur, oth = (A_S, A_S + 16) if t % 2 == 0 else (A_S + 16, A_S)
    pb = pv(j, t - 1, oth, 1) if t > 0 else pv((j - 1) % NBUF, 7, oth, 1)
    qa, qb = qk(j, t + 1, oth) if t < 7 else qk((j + 1) % NBUF, 0, oth)
    if last and t == 7: qa = qb = None
    i = 0
    for k, (n, m) in enumerate(zip(GAPS, (pb, qa, qb, pv(j, t, cur, 0), None))):
        for _ in range(n):
            a(f"v_exp_f32 v{cur+i}, v{cur+i}"); i += 1
            if extra and i in extra: a(extra[i])
        if m: a(m)

def attention(a, L, smods=""):
    a("s_setprio 1")
    a(f"s_mul_i32 s36, s{S_W}, {16*KT}\ns_add_u32 s36, s36, {KF}")
    srd(a, 40, P_WS, "s36", 16 * KT)
    a(f"s_mul_i32 s36, s2, 10240\ns_add_u32 s36, s36, {QF}")
    srd(a, 44, P_WS, "s36", 10240)
    srd(a, 48, P_WS, GV, 2048 * 8)
    a(f"v_lshlrev_b32 v{A_K0}, 4, v0\nv_and_b32 v6, 31, v0\nv_lshrrev_b32 v7, 5, v0")
    a(f"v_min_u32 v{A_KT}, 32, v0\nv_lshlrev_b32 v{A_KT}, 3, v{A_KT}\nv_add_u32 v{A_KT}, {K_T}, v{A_KT}")
    a(f"v_mul_u32_u24 v{A_V}, 336, v7\nv_lshl_add_u32 v{A_V}, v6, 4, v{A_V}\nv_cmp_lt_u32 vcc, 20, v6\nv_mov_b32 v{A_G}, 0x40000000\ns_nop 0\nv_cndmask_b32 v{A_V}, v{A_V}, v{A_G}, vcc")
    a(f"v_lshlrev_b32 v{A_S}, 3, v0\nv_add_u32 v{A_S}, 1024, v{A_S}\nv_cmp_lt_u32 vcc, 31, v0\ns_nop 1\nv_cndmask_b32 v{A_S}, v{A_S}, v{A_G}, vcc")
    a(f"s_lshl_b32 s37, s{S_W}, 1\ns_xor_b32 s37, s37, 6")
    kv_load(a, 0, "0")
    for t in range(8):
        a(f"s_xor_b32 s36, s37, {t}\ns_mul_i32 s36, s36, 1280")
        a(f"buffer_load_dwordx4 {vr(A_Q+6*t,4)}, v{A_K0}, s[44:47], s36 offen")
        a(f"buffer_load_dwordx2 {vr(A_Q+6*t+4,2)}, v{A_S}, s[44:47], s36 offen")
    a(f"s_lshr_b32 s36, s{S_W}, 1\ns_lshl_b32 s36, s36, 5\ns_lshl_b32 s38, s{S_TB}, 6\ns_add_u32 s36, s36, s38\ns_lshl_b32 s36, s36, 3\nv_lshlrev_b32 v{A_S+1}, 3, v6")
    a(f"buffer_load_dword v{A_G}, v{A_S+1}, s[48:51], s36 offen")
    a(f"v_mov_b32 v{A_IDX}, 0xdddddddd\ns_mov_b32 s39, 0")
    a(f"{L}_att_start:")
    a(f"s_mov_b32 s64, {KT}"); kv_load(a, 1, "s64")
    a(f"s_mov_b32 s64, {2*KT}"); kv_load(a, 2, "s64")
    for r in range(A_O, A_O + 100, 2): a(f"v_mov_b64 {vr(r,2)}, 0")
    for r in range(A_S + 24, A_S + 32, 2): a(f"v_mov_b64 {vr(r,2)}, 0")
    for r in range(A_KV + 14 * 3 + 10, A_KV + 14 * 3 + 14, 2): a(f"v_mov_b64 {vr(r,2)}, 0")
    a("s_mov_b32 s65, 3\ns_waitcnt vmcnt(8)")
    stamp(a, 1)
    for m in qk(0, 0, A_S): a(m)
    a.nop(12)
    def keytile(j, last=False):
        for t in range(8):
            extra = {}
            if t == 1 and not last and not NOKV:
                x = Asm(); x(f"s_add_u32 s64, s64, {KT}"); kv_load(x, (j - 1) % NBUF, "s64")
                extra = {3: x.l[0] + "\n" + x.l[1], 6: x.l[2], 9: x.l[3], 12: x.l[4]}
            if t == 7 and not last:
                extra = {3: "s_waitcnt vmcnt(8)"}
            if last and t >= 2:
                o = A_O + 12 * (t - 2)
                extra = {3 + 3 * i: f"ds_write_b128 v6, {vr(o+4*i,4)} offset:{3072*(t-2) + 1024*i}" for i in range(3)}
            period(a, j, t, last, extra)
    a(".p2align 3")
    a(f"{L}_att_loop:")
    for j in range(3): keytile(j)
    a(f"s_cmp_eq_u32 s65, 0\ns_cbranch_scc1 {L}_att_last")
    keytile(3)
    a(f"s_sub_u32 s65, s65, 1\ns_branch {L}_att_loop")
    a(f"{L}_att_last:"); stamp(a, 2)
    lds_spin(a, C_G1B, 4, 6, 7)
    a(f"s_mul_i32 s36, s{S_W}, 18432\ns_add_u32 s36, s36, {SCR}\nv_add_u32 v6, s36, v{A_K0}")
    keytile(3, True)
    a.nop(2)
    a(pv(3, 7, A_S + 16, 1))
    stamp(a, 3)
    lds_arrive(a, C_ATT, 6, 7)
    for j in (1, 2, 3):
        a(f"s_xor_b32 s36, s{S_W}, {j}\ns_mul_i32 s36, s36, 18432\ns_add_u32 s36, s36, {SCR + 3072*(6 ^ (2*j))}\nv_add_u32 v{A_S+j}, s36, v{A_K0}")
    a(f"s_mul_i32 s66, s39, 12\ns_add_u32 s66, s66, 4")
    lds_spin(a, C_ATT, "s66", 6, 7)
    a("s_waitcnt vmcnt(0)")
    stamp(a, 4)
    P = A_KV
    for j in (1, 2, 3):
        for i in range(6):
            a.ds(f"ds_read_b128 {vr(P+24*(j-1)+4*i,4)}, v{A_S+j} offset:{1024*i}", ("p", j))
    O = A_O + 72
    for j in (1, 2, 3):
        a.wait(lg=("p", j))
        for i in range(0, 24, 2):
            a(f"v_pk_add_f32 {vr(O+i,2)}, {vr(O+i,2)}, {vr(P+24*(j-1)+i,2)}")
    T = A_S
    a(f"v_mov_b32 v{T}, v{O+8}\nv_mov_b32 v{T+2}, v{O+8}\nv_mov_b32 v{T+1}, v{O+20}\nv_mov_b32 v{T+4}, v{O+20}\ns_nop 0")
    a(f"v_permlane32_swap_b32 v{T}, v{T+2}\nv_permlane32_swap_b32 v{T+1}, v{T+4}")
    a(f"s_cmp_lg_u32 s39, 0\ns_cbranch_scc1 {L}_att_ok")
    a(f"s_mov_b32 s67, {fbits(2.0**-80)}\ns_mov_b32 s68, {fbits(2.0**80)}")
    a(f"v_cmp_nle_f32 s[70:71], s67, v{T+2}\nv_cmp_nge_f32 s[72:73], s68, v{T+2}\nv_cmp_nle_f32 s[74:75], s67, v{T+4}\nv_cmp_nge_f32 s[92:93], s68, v{T+4}")
    a("s_nop 1\ns_or_b64 s[70:71], s[70:71], s[72:73]\ns_or_b64 s[74:75], s[74:75], s[92:93]\ns_or_b64 s[70:71], s[70:71], s[74:75]")
    a(f"s_cselect_b32 s36, 0x101, 1\nv_mov_b32 v6, {C_BAD}\nv_mov_b32 v7, s36\ns_mov_b64 exec, 1\nds_add_u32 v6, v7\ns_mov_b64 exec, -1")
    a(f"{L}_att_ok:")
    a(f"v_rcp_f32 v{T+2}, v{T+2}\nv_rcp_f32 v{T+4}, v{T+4}\ns_nop 0\nv_mul_f32 v{T+2}, v{T+2}, v{A_G}\nv_mul_f32 v{T+4}, v{T+4}, v{A_G}")
    for e in range(2):
        for i in range(0, 12, 2):
            a(f"v_pk_mul_f32 {vr(O+12*e+i,2)}, {vr(O+12*e+i,2)}, {vr(T+2+2*e,2)} op_sel_hi:[1,0]")
    for e in range(2):
        for i in range(4):
            a(f"v_cvt_pk_bf16_f32 v{P+4*e+i}, v{O+12*e+2*i}, v{O+12*e+2*i+1}")
        for i in range(2):
            a(f"v_cvt_pk_bf16_f32 v{P+8+2*e+i}, v{O+12*e+8+2*i}, v{O+12*e+9+2*i}")
    a(f"s_mul_i32 s36, s{S_TB}, 81920\ns_add_u32 s36, s36, {OF}")
    srd(a, 52, P_WS, "s36", 81920)
    a(f"v_and_b32 v{T}, 15, v0\nv_lshlrev_b32 v{T}, 4, v{T}\nv_bfe_u32 v{T+1}, v0, 4, 1\nv_lshl_add_u32 v{T}, v{T+1}, 10, v{T}")
    a(f"v_lshrrev_b32 v{T+1}, 5, v0\nv_lshl_add_u32 v{T+1}, v{T+1}, 8, v{T}")
    a(f"s_lshr_b32 s66, s{S_HB}, 1\ns_mul_i32 s66, s66, 20480\ns_lshr_b32 s36, s{S_W}, 1\ns_lshl_b32 s36, s36, 11\ns_add_u32 s66, s66, s36")
    a(f"s_and_b32 s36, s{S_HB}, 1\ns_lshl_b32 s36, s36, 1\ns_and_b32 s67, s{S_W}, 1\ns_add_u32 s36, s36, s67")
    a("s_lshl_b32 s67, s36, 12\ns_add_u32 s67, s67, s66\ns_lshl_b32 s36, s36, 8\ns_add_u32 s66, s66, s36\ns_add_u32 s66, s66, 16384")
    a(f"s_cmp_lg_u32 s39, 0\ns_cbranch_scc1 {L}_att_store")
    _uid[0] += 1; u = _uid[0]
    a(f"s_mov_b32 s95, 0x40000\nL_spin{u}:\nds_read_b32 v7, v6\ns_waitcnt lgkmcnt(0)\nv_readfirstlane_b32 s94, v7\ns_nop 0\ns_and_b32 s93, s94, 0xff\ns_cmp_ge_u32 s93, 4\ns_cbranch_scc1 L_spun{u}")
    a(f"s_sub_u32 s95, s95, 1\ns_cbranch_scc0 L_spin{u}\nL_spun{u}:")
    a(f"s_lshr_b32 s94, s94, 8\ns_cbranch_scc1 {L}_att_slow")
    a(f"{L}_att_store:"); stamp(a, 5)
    a(f"buffer_store_dwordx4 {vr(P,4)}, v{T+1}, s[52:55], s67 offen{smods}")
    a(f"buffer_store_dwordx4 {vr(P+4,4)}, v{T+1}, s[52:55], s67 offen offset:512{smods}")
    a(f"s_mov_b32 exec_hi, 0\nbuffer_store_dwordx4 {vr(P+8,4)}, v{T}, s[52:55], s66 offen{smods}\ns_mov_b64 exec, -1")
    a(f"s_branch {L}_att_done")
    a(f"{L}_att_slow:")
    M = A_O
    for t in range(8): a(f"v_mov_b32 v{M+t}, 0xff800000")
    a("s_mov_b32 s64, 0\ns_mov_b32 s39, 1")
    a(f"{L}_slow_loop:")
    kv_load(a, 0, "s64")
    a("s_waitcnt vmcnt(0)")
    for t in range(8):
        for m in qk(0, t, A_S): a(m)
        a.nop(16)
        for i in range(0, 16, 2):
            a(f"v_max3_f32 v{M+t}, v{M+t}, v{A_S+i}, v{A_S+i+1}")
    a(f"s_add_u32 s64, s64, {KT}\ns_cmp_lt_u32 s64, {16*KT}\ns_cbranch_scc1 {L}_slow_loop")
    a(f"v_lshlrev_b32 v{A_S}, 2, v0\ns_lshl_b32 s36, s{S_W}, 11\ns_add_u32 s36, s36, {SCR}\nv_add_u32 v{A_S}, s36, v{A_S}")
    for t in range(8):
        a(f"s_xor_b32 s36, s37, {t}\ns_lshl_b32 s36, s36, 8\nv_add_u32 v{A_S+1}, s36, v{A_S}\nds_write_b32 v{A_S+1}, v{M+t}")
    lds_arrive(a, C_ATT, 6, 7)
    lds_spin(a, C_ATT, 8, 6, 7)
    a(f"v_and_b32 v{A_S}, 31, v0\nv_lshlrev_b32 v{A_S}, 2, v{A_S}\nv_add_u32 v{A_S}, {SCR}, v{A_S}")
    for t in range(8):
        a(f"s_xor_b32 s36, s37, {t}\ns_lshl_b32 s36, s36, 8\nv_add_u32 v{A_S+1}, s36, v{A_S}")
        for w in range(4):
            a(f"ds_read2_b32 {vr(A_S+2+2*w,2)}, v{A_S+1} offset0:0 offset1:32\nv_add_u32 v{A_S+1}, 2048, v{A_S+1}")
        a("s_waitcnt lgkmcnt(0)")
        for i in range(0, 8, 2):
            a(f"v_max3_f32 v{M+t}, v{M+t}, v{A_S+2+i}, v{A_S+3+i}")
        m, h1, h2 = M + t, A_S + 2, A_S + 3
        a(f"v_sub_f32 v{m}, 0, v{m}\nv_and_b32 v{h1}, 0xffff0000, v{m}\nv_sub_f32 v{m}, v{m}, v{h1}\nv_and_b32 v{h2}, 0xffff0000, v{m}\nv_sub_f32 v{m}, v{m}, v{h2}")
        a(f"v_lshrrev_b32 v{h1}, 16, v{h1}\nv_or_b32 v{h1}, v{h1}, v{h2}\nv_lshrrev_b32 v{m}, 16, v{m}")
        a(f"s_mov_b32 exec_lo, 0\nv_mov_b32 v{A_Q+6*t+4}, v{h1}\nv_mov_b32 v{A_Q+6*t+5}, v{m}\ns_mov_b32 exec_lo, -1")
    lds_arrive(a, C_ATT, 6, 7)
    lds_spin(a, C_ATT, 12, 6, 7)
    kv_load(a, 0, "0")
    a(f"s_branch {L}_att_start")
    a(f"{L}_att_done:")

def k_main():
    L = "main_kernel"
    a = Asm(); head(a, L)
    a(f"v_lshlrev_b32 v1, 2, v0\nv_add_u32 v1, {CNT}, v1\nv_mov_b32 v2, 0\nds_write_b32 v1, v2")
    a("s_waitcnt lgkmcnt(0)\ns_barrier")
    a(f"s_cmp_lt_u32 s{S_W}, 4\ns_cbranch_scc0 {L}_gemm")
    attention(a, L)
    a(f"s_branch {L}_fin")
    a(f"{L}_gemm:")
    a(f"s_sub_u32 s37, s{S_W}, 4\ns_lshl_b32 s38, s37, 14")
    gemm_addr(a, 37)
    gemm1(a, L)
    a(f"{L}_fin:"); endpgm(a, 1); a(f"{L}_end:\ns_endpgm")
    return a, L, 256, LDS_MAIN

def gemm2(a, L, lmods=""):
    srd(a, 40, P_W2, 0, 1728 * 4096)
    srd(a, 44, P_WS, GF, 54 * 40960)
    srd(a, 48, P_WS, GV, 2048 * 8)
    srd(a, 52, P_B2, 0, 4096)
    srd(a, 56, P_WO, 0, 640 * 1280)
    a(f"s_mul_i32 s36, s{S_TB}, 81920\ns_add_u32 s36, s36, {OF}")
    srd(a, 60, P_WS, "s36", 81920)
    gemm_dma_addr(a, 4096)
    a(f"s_lshl_b32 s66, s37, 17\ns_lshl_b32 s36, s{S_TB}, 7\ns_add_u32 s66, s66, s36")
    a(f"s_mul_i32 s67, s37, 40960\ns_mul_i32 s36, s{S_HB}, 5120\ns_add_u32 s67, s67, s36")
    g = Gemm(a, "g2", 14, 40, 44, 66, 67, 38, 4 * 32 * 4096, 4 * 40960, False, lmods)
    OM = 208
    a(f"v_and_b32 v11, 15, v0\nv_lshlrev_b32 v12, 3, v11\nv_lshlrev_b32 v11, 1, v11\ns_lshl_b32 s68, s{S_TB}, 9\ns_lshl_b32 s69, s{S_TB}, 7")
    for cb in range(4):
        a.vmem(f"buffer_load_dword v{OM+2*cb}, v12, s[48:51], s68 offen offset:{128*cb+4}", "om")
        a.vmem(f"buffer_load_ushort v{OM+2*cb+1}, v11, s[52:55], s69 offen offset:{32*cb}", "om")
    g.pro_both()
    WM, WT, WA = 216, 221, 226
    a(f"s_mul_i32 s70, s{S_HB}, 160")
    def outs(i, vrho, vc):
        a(f"v_lshrrev_b32 v14, 4, v{vrho}\nv_lshl_add_u32 v14, v14, 2, v{vrho}\nv_mul_u32_u24 v14, 1280, v14\nv_add3_u32 v{WM+i}, v14, v{vc}, s70")
        a(f"v_lshrrev_b32 v14, 4, v{vrho}\nv_bfe_u32 v15, v{vrho}, 2, 1\nv_lshl_add_u32 v14, v14, 1, v15\nv_bfe_u32 v15, v{vrho}, 3, 1\nv_lshl_add_u32 v14, v14, 1, v15")
        a(f"v_mul_u32_u24 v14, 20, v14\nv_and_b32 v15, 3, v{vrho}\nv_add3_u32 v14, v14, v15, 16\nv_mul_u32_u24 v14, 1280, v14\nv_add3_u32 v{WT+i}, v14, v{vc}, s70")
    w160_patterns(a, 11, outs)
    tr160_addr(a, WA, 11)
    a(f"v_add_u32 v{WA}, s38, v{WA}\ns_mul_i32 s71, s37, {160*1280}")
    def wo_dma(i):
        if i < 4: a(f"s_add_u32 s72, s71, {40*1280*i}")
        for p in range(5):
            a(f"s_add_u32 m0, s38, {(i % 3)*5120 + 1024*p}\ns_nop 0")
            a.vmem(f"buffer_load_dwordx4 v{(WM if i < 4 else WT)+p}, s[56:59], {'s72' if i < 4 else 's71'} offen lds", ("wo", i))
    g.run(after_last_read=lambda: [wo_dma(i) for i in range(3)])
    stamp(a, 2)
    a.wait(vm="om")
    for cb in range(4):
        a(f"v_lshlrev_b32 v{OM+2*cb+1}, 16, v{OM+2*cb+1}\nv_mul_f32 v{OM+2*cb+1}, v{OM+2*cb+1}, v{OM+2*cb}")
    a(f"s_cmp_eq_u32 s37, 0\ns_cbranch_scc1 {L}_keepb")
    for cb in range(4): a(f"v_mov_b32 v{OM+2*cb+1}, 0")
    a(f"{L}_keepb:")
    for b in range(5):
        for cb in range(4):
            r = G_ACC + 4 * (4 * b + cb)
            for h in (0, 2):
                a(f"v_pk_fma_f32 {vr(r+h,2)}, {vr(r+h,2)}, {vr(OM+2*cb,2)}, {vr(OM+2*cb,2)} op_sel:[0,0,1] op_sel_hi:[1,0,1]")
    WOF = [176, 196, 228, 176, 196]
    def wo_rd(i):
        for b in range(5):
            r = WOF[i] + 4 * b
            a.ds(f"ds_read_b64_tr_b16 {vr(r,2)}, v{WA} offset:{(i % 3)*5120 + 32*b}", ("wo", i))
            a.ds(f"ds_read_b64_tr_b16 {vr(r+2,2)}, v{WA} offset:{(i % 3)*5120 + 32*b + 1280}", ("wo", i))
    for i in range(3):
        a.wait(vm=("wo", i)); wo_rd(i); a.wait(lg="all")
        if i < 2: wo_dma(3 + i)
    return WOF, wo_rd

def wo_part(a, L, WOF, wo_rd, lmods=""):
    a("s_mul_i32 s72, s37, 20480")
    for i in range(5):
        if i: a("s_add_u32 s72, s72, 4096")
        for cb in range(4):
            a.vmem(f"buffer_load_dwordx4 {vr(G_AR+16*i+4*cb,4)}, v{G_ACT}, s[60:63], s72 offen offset:{1024*cb}{lmods}", ("o", i))
    for i in range(5):
        a.wait(vm=("o", i), lg=("wo", i))
        for b in range(5):
            for cb in range(4):
                acc = vr(G_ACC + 4 * (4 * b + cb), 4)
                a(f"v_mfma_f32_16x16x32_bf16 {acc}, {vr(WOF[i]+4*b,4)}, {vr(G_AR+16*i+4*cb,4)}, {acc}")
        if i < 2: wo_rd(3 + i)

def final_write(a):
    a(f"v_and_b32 v11, 15, v0\nv_mul_u32_u24 v11, 11, v11\nv_lshrrev_b32 v12, 5, v0\nv_add_u32 v11, v11, v12\nv_lshrrev_b32 v12, 4, v0\nv_lshlrev_b32 v12, 8, v12")
    a(f"s_mul_i32 s36, s37, 20480\ns_add_u32 s36, s36, {SCR}\nv_add_u32 v12, s36, v12")
    for b in range(5):
        a(f"v_add_u32 v13, {2*b}, v11\nv_and_b32 v13, 15, v13\nv_lshl_add_u32 v{G_DMA+b}, v13, 4, v12")
    for b in range(5):
        for cb in range(4):
            a.ds(f"ds_write_b128 v{G_DMA+b}, {vr(G_ACC+4*(4*b+cb),4)} offset:{1024*(4*b+cb)}")

def final_read(a, L, nw, swave):
    srd(a, 40, P_OUT, 0, 2048 * 1280)
    a(f"s_mul_i32 s64, s{S_TB}, {64*1280}\ns_mul_i32 s36, s{S_HB}, 160\ns_add_u32 s64, s64, s36")
    rounds = (10 + nw - 1) // nw
    for r in range(rounds):
        a(f"s_add_u32 s36, s{swave}, {r*nw}\ns_lshl_b32 s36, s36, 6\nv_add_u32 v2, s36, v0")
        a("v_mul_u32_u24 v3, 6554, v2\nv_lshrrev_b32 v3, 16, v3\nv_mul_u32_u24 v4, 10, v3\nv_sub_u32 v4, v2, v4")
        a(f"v_mul_u32_u24 v{8+3*r}, 1280, v3\nv_lshl_add_u32 v{8+3*r}, v4, 4, v{8+3*r}")
        a("v_and_b32 v5, 15, v3\nv_mul_u32_u24 v5, 11, v5\nv_add_u32 v5, v5, v4\nv_and_b32 v5, 15, v5\nv_lshlrev_b32 v5, 4, v5")
        a("v_lshrrev_b32 v3, 4, v3\nv_lshl_add_u32 v5, v3, 10, v5\nv_lshrrev_b32 v3, 1, v4\nv_lshl_add_u32 v5, v3, 12, v5\nv_and_b32 v3, 1, v4\nv_lshl_add_u32 v5, v3, 9, v5")
        a(f"v_add_u32 v{9+3*r}, {SCR}, v5\nv_add_u32 v{10+3*r}, {SCR+40960}, v5")
    a("s_waitcnt lgkmcnt(0)\ns_barrier"); a.lg = []; stamp(a, 5)
    for r in range(rounds):
        if (r + 1) * nw > 10:
            a(f"s_cmp_ge_u32 s{swave}, {10 - r*nw}\ns_cbranch_scc1 {L}_fin")
        b = 32 + 32 * r
        for src in range(4):
            for e in range(2):
                a.ds(f"ds_read_b128 {vr(b+8*src+4*e,4)}, v{9+3*r+(src>>1)} offset:{(src&1)*20480 + 256*e}")
        a.wait(lg="all")
        for j in range(0, 8, 2):
            a(f"v_pk_add_f32 {vr(b+j,2)}, {vr(b+j,2)}, {vr(b+8+j,2)}\nv_pk_add_f32 {vr(b+16+j,2)}, {vr(b+16+j,2)}, {vr(b+24+j,2)}")
        for j in range(0, 8, 2):
            a(f"v_pk_add_f32 {vr(b+j,2)}, {vr(b+j,2)}, {vr(b+16+j,2)}")
        for j in range(4):
            a(f"v_cvt_pk_bf16_f32 v{b+j}, v{b+2*j}, v{b+2*j+1}")
        a(f"buffer_store_dwordx4 {vr(b,4)}, v{8+3*r}, s[40:43], s64 offen")

def k_fin():
    L = "fin_kernel"
    a = Asm(); head(a, L)
    a("s_waitcnt lgkmcnt(0)")
    a(f"s_mov_b32 s37, s{S_W}\ns_lshl_b32 s38, s37, 14")
    gemm_addr(a, 37)
    WOF, wo_rd = gemm2(a, L)
    stamp(a, 3)
    wo_part(a, L, WOF, wo_rd)
    stamp(a, 4)
    final_write(a)
    final_read(a, L, 4, 37)
    a(f"{L}_fin:"); endpgm(a, 2); a(f"{L}_end:\ns_endpgm")
    return a, L, 256, LDS_MAIN

def build(path):
    ks = [(k_pre(), 512), (k_main(), 512), (k_fin(), 256)]
    hdr = open("cdna_kernels/" + NAME + ".s.ref").read().split("; Override launch")[0]
    out = hdr
    for (a, L, nv, lds), blk in ks:
        out += f"; @launch kernel={L} grid=(256,1,1) block=({blk},1,1) lds={lds}\n"
    out += '.amdgcn_target "amdgcn-amd-amdhsa--gfx950"\n.text\n'
    bad = 0
    for (a, L, nv, lds), blk in ks:
        for m in lint(a.l, L): print(m); bad += 1
        out += f".globl {L}\n" + a.text()
    out += '.section .rodata,"a"\n'
    for (a, L, nv, lds), blk in ks:
        out += desc(L, nv)
    open(path, "w").write(out)
    print("written", path, "lint issues:", bad)

if __name__ == "__main__":
    STAMP = len(sys.argv) > 2
    build(sys.argv[1] if len(sys.argv) > 1 else "cdna_kernels/" + NAME + ".s")
```
